```python
import torch

def _softmax(x, axis=-1):
    return torch.softmax(x, dim=axis)
def _gelu(x):
    return torch.nn.functional.gelu(x, approximate="tanh")
def _silu(x):
    return torch.nn.functional.silu(x)
def _sigmoid(x):
    return torch.sigmoid(x)
def _layernorm(x, axis=-1, eps=1e-5):
    m = x.mean(dim=axis, keepdim=True)
    v = x.var(dim=axis, keepdim=True, unbiased=False)
    return (x - m) / torch.sqrt(v + eps)
def _scatter_add(tgt, idx, src, axis=0):
    return tgt.clone().index_add_(axis, idx, src)
def _segment_sum(src, seg, n):
    out = torch.zeros((n,) + src.shape[1:], dtype=src.dtype)
    return out.index_add_(0, seg, src)
def _pad(x, pw):
    flat = tuple(v for pair in reversed(pw) for v in pair)
    return torch.nn.functional.pad(x, flat)

kernel_name = 'parallel_sum__ssm_conv_s4__glu_gated_reglu__prompt'

def setup_inputs():

    _w = (lambda a: (lambda t: t.to(torch.bfloat16) if t.is_floating_point() else t)(torch.as_tensor(a)))
    def _A_setup():
        B, L, D, N = 1, 2048, 512, 128
        A_re = -(lambda _x: torch.exp(torch.as_tensor(_x)))((lambda *s: torch.randn(*s, dtype=torch.bfloat16) * 6.4)(D, N))
        A_im = torch.pi * (lambda *s: torch.randn(*s, dtype=torch.bfloat16) * 0.05)(D, N)
        B_re = (lambda *s: torch.randn(*s, dtype=torch.bfloat16) * 0.1)(D, N)
        B_im = (lambda *s: torch.randn(*s, dtype=torch.bfloat16) * 0.1)(D, N)
        C_re = (lambda *s: torch.randn(*s, dtype=torch.bfloat16) * 0.1)(D, N)
        C_im = (lambda *s: torch.randn(*s, dtype=torch.bfloat16) * 0.1)(D, N)
        log_dt = (lambda *s: torch.randn(*s, dtype=torch.bfloat16) * 0.05)(D) * 0.5 - 4.0
        Dskip = (lambda *s: torch.randn(*s, dtype=torch.bfloat16) * 0.05)(D)
        return {
            "u": _w((lambda *s: torch.randn(*s, dtype=torch.bfloat16) * 0.05)(B, L, D)),
            "A_re": _w(A_re),
            "A_im": _w(A_im),
            "B_re": _w(B_re),
            "B_im": _w(B_im),
            "C_re": _w(C_re),
            "C_im": _w(C_im),
            "log_dt": _w(log_dt),
            "Dskip": _w(Dskip),
        }
    _A_in = _A_setup()

    def _B_setup():
        B, S, D, F = 1, 2048, 512, 1792
        return {
            "x": _w((lambda *s: torch.randn(*s, dtype=torch.bfloat16) * 0.05)(B, S, D)),
            "W_gate": _w((lambda *s: torch.randn(*s, dtype=torch.bfloat16) * 0.4)(D, F) * (2.0 / D) ** 0.5),
            "W_up": _w((lambda *s: torch.randn(*s, dtype=torch.bfloat16) * 0.4)(D, F) * (2.0 / D) ** 0.5),
            "W_down": _w((lambda *s: torch.randn(*s, dtype=torch.bfloat16) * 0.4)(F, D) * (1.0 / F) ** 0.5),
        }
    _B_in = _B_setup()

    return {
        "A_u": _A_in["u"],
        "A_A_re": _A_in["A_re"],
        "A_A_im": _A_in["A_im"],
        "A_B_re": _A_in["B_re"],
        "A_B_im": _A_in["B_im"],
        "A_C_re": _A_in["C_re"],
        "A_C_im": _A_in["C_im"],
        "A_log_dt": _A_in["log_dt"],
        "A_Dskip": _A_in["Dskip"],
        "B_x": _B_in["x"],
        "B_W_gate": _B_in["W_gate"],
        "B_W_up": _B_in["W_up"],
        "B_W_down": _B_in["W_down"],
    }

def reference(A_u, A_A_re, A_A_im, A_B_re, A_B_im, A_C_re, A_C_im, A_log_dt, A_Dskip, B_x, B_W_gate, B_W_up, B_W_down):
    def _A_ref(u, A_re, A_im, B_re, B_im, C_re, C_im, log_dt, Dskip):
        Bsz, L, D = u.shape
        dt = torch.exp(log_dt)[:, None]
        A = A_re + 1j * A_im
        Bc = B_re + 1j * B_im
        Cc = C_re + 1j * C_im
        logdA = dt * A
        dB = dt * Bc
        l = (lambda x, dt: x.to(dt))(torch.arange(L), A_re.dtype)
        P = torch.exp(logdA[:, :, None] * l[None, None, :])
        K = torch.einsum("dn,dnl,dn->dl", Cc, P, dB).real
        L2 = 2 * L
        Kp = _pad(K, ((0, 0), (0, L)))
        up = (lambda x, *d: x.permute(*d))(u, 0, 2, 1)
        up = _pad(up, ((0, 0), (0, 0), (0, L)))
        Kf = (lambda x, axes=(-2,-1): torch.fft.rfft2(x.float(), dim=axes))(Kp[:, None, :], axes=(-2, -1))
        Uf = (lambda x, axes=(-2,-1): torch.fft.rfft2(x.float(), dim=axes))(up[:, :, None, :], axes=(-2, -1))
        Yf = Uf * Kf[None, :, :, :]
        y = (lambda x, s, axes=(-2,-1): torch.fft.irfft2(x, s=s, dim=axes).to(torch.bfloat16))(Yf, (1, L2), axes=(-2, -1))[:, :, 0, :L]
        y = (lambda x, *d: x.permute(*d))(y, 0, 2, 1) + u * Dskip[None, None, :]
        return y

    def _B_ref(x, W_gate, W_up, W_down):
        gate = torch.einsum("bsd,df->bsf", x, W_gate)
        up = torch.einsum("bsd,df->bsf", x, W_up)
        gate = gate * (lambda x, dt: x.to(dt))(gate > 0, gate.dtype)
        h = gate * up
        return torch.einsum("bsf,fd->bsd", h, W_down)

    x = A_u
    xn = _layernorm(x, axis=-1)
    return x + _A_ref(xn, A_A_re, A_A_im, A_B_re, A_B_im, A_C_re, A_C_im, A_log_dt, A_Dskip) + _B_ref(xn, B_W_gate, B_W_up, B_W_down)
```

```python
import re

TRANS = ('v_exp_f32', 'v_log_f32', 'v_rcp_f32', 'v_rsq_f32', 'v_sqrt_f32', 'v_sin_f32', 'v_cos_f32', 'v_rcp_iflag_f32')

def regs(tok):
    tok = tok.strip()
    tok = re.sub(r'^-', '', tok)
    m = re.match(r'^(?:abs|neg)\((.*)\)$', tok)
    if m: tok = m.group(1)
    tok = tok.strip('|')
    m = re.match(r'^([vsa])(\d+)$', tok)
    if m: return {(m.group(1), int(m.group(2)))}
    m = re.match(r'^([vsa])\[(\d+):(\d+)\]$', tok)
    if m: return {(m.group(1), i) for i in range(int(m.group(2)), int(m.group(3)) + 1)}
    if tok in ('vcc', 'vcc_lo', 'vcc_hi'): return {('x', 'vcc')}
    if tok in ('exec', 'exec_lo', 'exec_hi'): return {('x', 'exec')}
    if tok == 'm0': return {('x', 'm0')}
    return set()

class Ins:
    def __init__(self, text):
        self.text = text
        t = text.split(';')[0].strip()
        self.label = None
        if t.endswith(':'):
            self.label = t[:-1]; self.mn = None; self.kind = 'label'; self.defs = set(); self.uses = set(); return
        if t.startswith('.'):
            self.mn = t; self.kind = 'dir'; self.defs = set(); self.uses = set(); return
        parts = t.split(None, 1)
        mn = parts[0]; self.mn = mn
        rest = parts[1] if len(parts) > 1 else ''
        ops = [o.strip() for o in re.split(r',(?![^\[]*\])', rest)] if rest else []
        mods = ''
        if ops:
            last = ops[-1].split(None, 1)
            ops[-1] = last[0]
            mods = last[1] if len(last) > 1 else ''
        self.ops = ops; self.mods = mods
        R = [regs(o) for o in ops]
        U = lambda l: set().union(*l) if l else set()
        self.defs = set(); self.uses = set(); self.stdata = set()
        self.dpp = ('row_' in mods or 'quad_perm' in mods or mn.endswith('_dpp'))
        base = re.sub(r'_(e32|e64|dpp|sdwa)$', '', mn)
        if mn.startswith('v_mfma'):
            self.kind = 'mfma'; self.passes = 8 if ('32x32' in mn or 'x4_f32' in mn) else 4
            self.defs = R[0]; self.A = R[1]; self.B = R[2]; self.C = R[3]; self.uses = R[1] | R[2] | R[3]
        elif mn.startswith('v_'):
            self.kind = 'valu'; self.trans = base in TRANS
            if base.startswith('v_cmp'):
                self.defs = R[0]; self.uses = U(R[1:])
                if base.startswith('v_cmpx'): self.defs = self.defs | {('x', 'exec')}
            elif 'swap' in base:
                self.defs = R[0] | R[1]; self.uses = R[0] | R[1]
            elif base in ('v_add_co_u32', 'v_sub_co_u32', 'v_addc_co_u32', 'v_subb_co_u32', 'v_div_scale_f32', 'v_subrev_co_u32'):
                self.defs = R[0] | R[1]; self.uses = U(R[2:])
            else:
                self.defs = R[0]; self.uses = U(R[1:])
                if base in ('v_fmac_f32', 'v_dot2c_f32_bf16', 'v_writelane_b32') or self.dpp or 'UNUSED_PRESERVE' in mods: self.uses |= R[0]
                if base == 'v_div_fmas_f32': self.uses |= {('x', 'vcc')}
                if base == 'v_cndmask_b32' and len(ops) == 3: self.uses |= {('x', 'vcc')}
            self.lane_read = base in ('v_readlane_b32', 'v_readfirstlane_b32')
            self.permlane = base.startswith('v_permlane')
        elif mn.startswith('ds_'):
            self.kind = 'ds'
            if mn.startswith('ds_read') or mn.startswith('ds_bpermute') or mn.startswith('ds_permute') or mn.startswith('ds_swizzle'):
                self.defs = R[0]; self.uses = U(R[1:])
                if 'd16' in mn: self.uses |= R[0]
            else:
                self.uses = U(R)
            if 'addtid' in mn: self.uses |= {('x', 'm0')}
        elif mn.startswith('buffer_') or mn.startswith('global_'):
            self.kind = 'vmem'
            lds = bool(re.search(r'\blds\b', mods))
            self.lds = lds
            if '_load' in mn:
                if lds: self.uses = U(R) | {('x', 'm0')}
                else:
                    self.defs = R[0]; self.uses = U(R[1:])
                    if 'd16' in mn: self.uses |= R[0]
            elif '_store' in mn or '_atomic' in mn:
                self.uses = U(R)
                data = R[0] if mn.startswith('buffer_') else R[1]
                if 'x3' in mn or 'x4' in mn: self.stdata = data
            else:
                self.uses = U(R)
        elif mn.startswith('s_'):
            self.kind = 'salu'
            if mn.startswith('s_cmp') or mn.startswith('s_bitcmp') or mn.startswith('s_cbranch') or mn in ('s_branch', 's_waitcnt', 's_nop', 's_barrier', 's_endpgm', 's_sleep', 's_setprio'):
                self.uses = U(R)
            else:
                self.defs = R[0] if R else set(); self.uses = U(R[1:])
                if 'saveexec' in mn: self.defs = self.defs | {('x', 'exec')}
        else:
            raise ValueError('unknown instr: ' + text)

    def states(self):
        if self.kind in ('label', 'dir'): return 0
        if self.mn == 's_nop': return int(self.ops[0], 0) + 1
        return 1

def vs(s): return {r for r in s if r[0] in 'va'}
def ss(s): return {r for r in s if r[0] == 's' or r == ('x', 'vcc')}

def need(p, c):
    n = 0
    if p.kind == 'mfma':
        big = p.passes == 8
        D = p.defs
        if c.kind == 'mfma':
            if D & (c.A | c.B): n = max(n, 12 if big else 8)
            if D & c.C and not (D == c.C and p.passes == c.passes): n = max(n, 10 if big else 6)
            if D & c.defs and not (D & c.C): n = max(n, 12 if big else 8)
        elif c.kind in ('valu', 'ds', 'vmem'):
            if D & (c.uses | c.defs): n = max(n, 12 if big else 8)
            if c.kind == 'valu' and p.C & c.defs: n = max(n, 7 if big else 3)
    if p.kind == 'valu':
        dv = vs(p.defs); dsg = ss(p.defs)
        if c.kind == 'mfma' and dv & c.uses: n = max(n, 2)
        if c.kind == 'mfma' and ('x', 'exec') in p.defs: n = max(n, 4)
        if c.kind == 'valu':
            if p.trans and not c.trans and dv & (c.uses): n = max(n, 1)
            if c.lane_read and dv & c.uses: n = max(n, 1)
            if c.permlane and dv & c.uses: n = max(n, 2)
            if c.dpp and dv & c.uses: n = max(n, 2)
            if dsg & c.uses: n = max(n, 4 if c.mn.startswith(('v_readlane', 'v_writelane')) else 2)
            if ('sdwa' in p.mn or 'op_sel' in p.mods) and dv & (c.uses | c.defs): n = max(n, 1)
            if ('x', 'exec') in p.defs: n = max(n, 5)
        if c.kind == 'vmem' and dsg & c.uses: n = max(n, 5)
        if c.kind == 'salu' and dsg & c.uses and not c.mn.startswith('s_cbranch'): n = max(n, 1)
    if p.kind == 'salu' and ('x', 'm0') in p.defs and ('x', 'm0') in c.uses and c.kind in ('vmem', 'ds'): n = max(n, 1)
    if p.kind == 'vmem' and p.stdata and c.kind in ('valu', 'mfma', 'ds', 'vmem') and p.stdata & c.defs: n = max(n, 2)
    return n

WIN = 24

def fix_linear(ins):
    out = []
    for c in ins:
        if c.kind not in ('label', 'dir'):
            dist = 0; req = 0
            for p in reversed(out):
                if p.kind in ('label', 'dir'): continue
                if p.mn in ('s_branch', 's_endpgm'): break
                req = max(req, need(p, c) - dist)
                dist += p.states()
                if dist > WIN: break
            while req > 0:
                k = min(req, 16)
                out.append(Ins('s_nop %d' % (k - 1))); req -= k
        out.append(c)
    return out

def check_edges(ins):
    pos = {c.label: i for i, c in enumerate(ins) if c.kind == 'label'}
    bad = []
    for i, b in enumerate(ins):
        if b.kind == 'salu' and (b.mn == 's_branch' or b.mn.startswith('s_cbranch')):
            tgt = pos[b.ops[0]]
            pre = []; d = 0
            for p in reversed(ins[:i + 1]):
                if p.kind in ('label', 'dir'): continue
                pre.append(p); d += p.states()
                if d > WIN: break
            d2 = 0
            for c in ins[tgt:]:
                if c.kind in ('label', 'dir'): continue
                dist = d2
                for p in pre:
                    if need(p, c) > dist: bad.append((b.text, p.text, c.text, need(p, c), dist))
                    dist += p.states()
                d2 += c.states()
                if d2 > WIN or c.mn in ('s_branch', 's_endpgm'): break
    return bad

class Asm:
    def __init__(self): self.raw = []
    def __call__(self, s):
        for l in s.split('\n'):
            l = l.strip()
            if l and not l.startswith(';'): self.raw.append(l)
    def finish(self):
        ins = fix_linear([Ins(l) for l in self.raw])
        bad = check_edges(ins)
        for b in bad: print('EDGE HAZARD', b)
        assert not bad
        return '\n'.join((c.text if c.kind == 'label' else '    ' + c.text) for c in ins) + '\n'
```

```python
import sys
from asmlib import Asm

NAME = 'parallel_sum__ssm_conv_s4__glu_gated_reglu__prompt'
WS_NONCE = 0
WS_FS1, WS_FS2, WS_FH, WS_FY = 0x1000, 0x2000, 0x3000, 0xB000
WS_STATS, WS_CS = 0x20000, 0x28000
WS_PROF = 0x40000
WS_XNT, WS_YT, WS_H = 0x100000, 0x300000, 0x500000
WS_DUMP = 0xC00000
WS_SIZE = 0x1400000
LDS_SIZE = 163840
WR, XR = 0, 81920
TAB = 0
C0 = [73728, 73728 + 4352]
UL = [82432, 82432 + 4608]
CC = lambda dd, c: (dd * 3 + (c - 1)) * 4352 + 64 * c
RED = 32768
YST = 49152
WDZ = 98304
PART = 0
YL = 139264
ST = 0
CSP = 65536
L2E, L2E_LO, LN2, INV2PI = 0x3fb8aa3b, 0x32a57060, 0x3f317218, 0x3e22f983
SPIN = 400000

sX, sW, sWD, sOUT, sWS, sDBG = 36, 40, 44, 48, 52, 56
sWave, sXcd, sSlot, sNonce = 60, 61, 62, 63
def srd(b): return 's[%d:%d]' % (b, b + 3)
def v(a, n=1): return 'v%d' % a if n == 1 else 'v[%d:%d]' % (a, a + n - 1)

class Gen:
    def __init__(self, prof=False, dump=None):
        self.a = Asm(); self.prof = prof; self.dump = dump; self.nstamp = 0; self.uid = 0
    def L(self, name):
        self.uid += 1; return 'L_%s_%d' % (name, self.uid)
    def stamp(self, idx):
        if self.prof: self.a('s_memtime s[98:99]\ns_waitcnt lgkmcnt(0)\nv_writelane_b32 v15, s98, %d' % idx)

    def get_nonce(self):
        a = self.a; l = self.L('nonce'); e = self.L('nonce_ok')
        a('''s_mov_b32 s64, 0
%s:
v_mov_b32 v24, 0
buffer_load_dword v24, v24, %s, 0 offen sc1
s_add_u32 s64, s64, 1
s_waitcnt vmcnt(0)
v_readfirstlane_b32 s%d, v24
s_cmp_gt_u32 s64, %d
s_cbranch_scc1 %s
s_cmp_eq_u32 s%d, 0
s_cbranch_scc1 %s
%s:''' % (l, srd(sDBG), sNonce, SPIN, e, sNonce, l, e))
    def poll(self, base, first_s, count):
        a = self.a; l = self.L('poll'); e = self.L('poll_ok')
        a('v_min_u32 v25, %d, v0' % (count - 1))
        if first_s is not None: a('v_add_u32 v25, s%d, v25' % first_s)
        a('''v_lshlrev_b32 v25, 7, v25
s_mov_b32 s65, %d
s_mov_b32 s64, 0
%s:
buffer_load_dword v24, v25, %s, s65 offen sc1
s_add_u32 s64, s64, 1
s_waitcnt vmcnt(0)
v_cmp_ne_u32 vcc, s%d, v24
s_cmp_gt_u32 s64, %d
s_cbranch_scc1 %s
s_cbranch_vccnz %s
%s:''' % (base, l, srd(sWS), sNonce, SPIN, e, l, e))
    def flag(self, base, idx_s):
        a = self.a
        a('''s_lshl_b32 s64, s%d, 7
s_add_u32 s64, s64, %d
v_mov_b32 v24, s%d
v_mov_b32 v25, 0
s_mov_b64 exec, 1
buffer_store_dword v24, v25, %s, s64 offen sc1
s_mov_b64 exec, -1''' % (idx_s, base, sNonce, srd(sWS)))
    def wave0(self, fn):
        l = self.L('w0')
        self.a('s_cmp_lg_u32 s%d, 0\ns_cbranch_scc1 %s' % (sWave, l)); fn(); self.a(l + ':')
    def load_params(self):
        a = self.a
        a('''s_and_b32 s64, s%d, 1
s_lshl_b32 s65, s2, 1
s_add_u32 s64, s64, s65
s_bfe_u32 s65, s%d, 0x10001
s_lshl_b32 s78, s64, 8
s_lshl_b32 s65, s65, 7
s_add_u32 s78, s78, s65
v_lshl_add_u32 v26, v0, 1, s78
s_lshl_b32 s64, s64, 1
v_mov_b32 v27, s64''' % (sWave, sWave))
        for k in range(6): a('global_load_ushort v%d, v26, s[%d:%d]' % (16 + k, 6 + 2 * k, 7 + 2 * k))
        a('global_load_ushort v22, v27, s[18:19]\nglobal_load_ushort v23, v27, s[20:21]')

    def prologue(self):
        a = self.a
        a('''s_cmp_ge_u32 s2, 256
s_cbranch_scc1 L_exit
s_load_dwordx16 s[4:19], s[0:1], 0
s_load_dwordx16 s[20:35], s[0:1], 64
v_lshrrev_b32 v1, 6, v0
v_and_b32 v0, 63, v0
v_readfirstlane_b32 s%d, v1
s_and_b32 s%d, s2, 7
s_lshr_b32 s%d, s2, 3''' % (sWave, sXcd, sSlot))
        if self.prof: a('v_mov_b32 v15, 0')
        for b, size in ((sX, 2097152), (sW, 1835008), (sWD, 1835008), (sOUT, 2097152), (sWS, WS_SIZE), (sDBG, 256)):
            a('s_mov_b32 s%d, %d\ns_mov_b32 s%d, 0x20000' % (b + 2, size, b + 3))
        a('s_cmp_ge_u32 s%d, 4\ns_waitcnt lgkmcnt(0)' % sWave)
        a('s_cselect_b32 s%d, s26, s24\ns_cselect_b32 s%d, s27, s25' % (sW, sW + 1))
        for b, p in ((sX, 4), (sWD, 28), (sOUT, 30), (sWS, 34), (sDBG, 32)):
            a('s_mov_b32 s%d, s%d\ns_mov_b32 s%d, s%d' % (b, p, b + 1, p + 1))
        self.stamp(0)
        a('s_cmp_lt_u32 s%d, 4\ns_cbranch_scc1 L_role_s' % sSlot)

    def gemm1(self):
        a = self.a
        sI, sJ, sKW, sKX, sMW, sMX, sD, sDl, sT = 66, 67, 68, 69, 70, 71, 72, 73, 74
        sRW, sRX = 75, 76
        ACC, F0, F1 = 32, 96, 116
        a('''s_sub_u32 s64, s%d, 4
s_and_b32 s65, s64, 3
s_lshr_b32 s%d, s%d, 1
s_lshl_b32 s%d, s%d, 2
s_add_u32 s%d, s%d, s65
s_lshr_b32 s64, s64, 2
s_and_b32 s65, s%d, 1
s_mul_i32 s65, s65, 7
s_add_u32 s%d, s64, s65''' % (sSlot, sI, sXcd, sI, sI, sI, sI, sXcd, sJ))
        a('''v_lshrrev_b32 v10, 3, v0
v_lshrrev_b32 v11, 4, v0
v_and_b32 v12, 7, v0
v_xor_b32 v12, v12, v11
v_lshlrev_b32 v12, 4, v12
v_lshl_add_u32 v8, v10, 10, v12
v_xor_b32 v9, 64, v8
v_add_u32 v9, 7168, v9
s_lshl_b32 s%d, s%d, 17
s_lshl_b32 s64, s%d, 14
s_add_u32 s%d, s%d, s64
s_lshl_b32 s%d, s%d, 11
s_add_u32 s%d, s%d, %d''' % (sKX, sI, sWave, sKX, sKX, sMW, sWave, sMX, sMW, XR))
        def dma_x():
            a('''s_mov_b32 m0, s%d
buffer_load_dwordx4 v8, %s, s%d offen lds
buffer_load_dwordx4 v9, %s, s%d offen offset:1024 lds
s_add_u32 s%d, s%d, 128
s_add_u32 s%d, s%d, 16384
s_cmp_ge_u32 s%d, %d
s_cselect_b32 s64, 49152, 0
s_sub_u32 s%d, s%d, s64''' % (sMX, srd(sX), sKX, srd(sX), sKX, sKX, sKX, sMX, sMX, sMX, XR + 49152, sMX, sMX))
        def dma_w():
            a('''s_mov_b32 m0, s%d
s_add_u32 s64, s%d, 13312
buffer_load_dwordx4 v7, %s, s%d offen lds
buffer_load_dwordx4 v7, %s, s64 offen offset:1024 lds
s_add_u32 s%d, s%d, %d
s_add_u32 s%d, s%d, 16384
s_cmp_ge_u32 s%d, 81920
s_cselect_b32 s64, 81920, 0
s_sub_u32 s%d, s%d, s64''' % (sMW, sKW, srd(sW), sKW, srd(sW), sKW, sKW, 32 * 3584, sMW, sMW, sMW, sMW, sMW))
        dma_x()
        a('''s_lshr_b32 s%d, s%d, 2
v_lshl_add_u32 v12, v11, 1, s%d
v_bfe_u32 v13, v0, 1, 3
v_xor_b32 v12, v12, v13
v_lshlrev_b32 v12, 5, v12
v_and_b32 v13, 1, v0
v_lshl_or_b32 v12, v13, 4, v12
v_mul_u32_u24 v7, 3584, v11
v_add_u32 v7, v7, v12
s_and_b32 s64, s%d, 3
s_mul_i32 s%d, s64, %d
s_lshl_b32 s65, s%d, 8
s_add_u32 s%d, s%d, s65''' % (sT, sWave, sT, sWave, sKW, 8 * 3584, sJ, sKW, sKW))
        dma_w(); dma_w(); dma_w(); dma_x(); dma_w()
        a('''v_bfe_u32 v10, v0, 2, 2
v_bfe_u32 v11, v0, 4, 1
v_lshrrev_b32 v12, 5, v0
v_lshl_add_u32 v13, v12, 3, v10
v_lshlrev_b32 v13, 8, v13
v_lshl_or_b32 v13, v11, 13, v13
v_and_b32 v14, 3, v0
v_lshl_or_b32 v13, v14, 3, v13
v_lshl_add_u32 v10, v10, 1, v11
s_lshl_b32 s65, s%d, 2
v_xor_b32 v10, s65, v10
v_lshl_or_b32 v1, v10, 5, v13
v_xor_b32 v2, 32, v1
v_xor_b32 v3, 64, v1
v_xor_b32 v4, 0x60, v1
v_and_b32 v10, 31, v0
v_bfe_u32 v11, v0, 1, 3
v_xor_b32 v11, v11, v12
v_lshlrev_b32 v11, 4, v11
v_lshl_or_b32 v5, v10, 7, v11
s_and_b32 s64, s%d, 3
s_lshl_b32 s64, s64, 12
s_add_u32 s64, s64, %d
v_add_u32 v5, s64, v5
s_mov_b32 s%d, 0
s_mov_b32 s%d, 0
s_movk_i32 s79, 0x4000''' % (sT, sWave, XR, sRW, sRX))
        for r in range(64): a('v_mov_b32 v%d, 0' % (ACC + r))
        def reads(F, s, sx):
            for m in range(4):
                a('ds_read_b64_tr_b16 %s, v%d offset:%d' % (v(F + 4 * m, 2), 1 + m, s * 4096))
                a('ds_read_b64_tr_b16 %s, v%d offset:%d' % (v(F + 4 * m + 2, 2), 1 + m, s * 4096 + 1024))
            if sx == 0: a('ds_read_b128 %s, v5' % v(F + 16, 4))
            else: a('v_xor_b32 v6, %d, v5\nds_read_b128 %s, v6' % (32 * sx, v(F + 16, 4)))
        def mfmas(F):
            for m in range(4):
                a('v_mfma_f32_32x32x16_bf16 %s, %s, %s, %s' % (v(ACC + 16 * m, 16), v(F + 4 * m, 4), v(F + 16, 4), v(ACC + 16 * m, 16)))
        def next_w():
            a('''s_add_u32 s%d, s%d, 1
s_cmp_eq_u32 s%d, 5
s_cselect_b32 s%d, 0, s%d
s_cselect_b32 s%d, 0xffff0000, s79''' % (sRW, sRW, sRW, sRW, sRW, sDl))
            for m in range(4): a('v_add_u32 v%d, s%d, v%d' % (1 + m, sDl, 1 + m))
        def next_x():
            a('''s_add_u32 s%d, s%d, 1
s_cmp_eq_u32 s%d, 3
s_cselect_b32 s%d, 0, s%d
s_cselect_b32 s%d, 0xffff8000, s79
v_add_u32 v5, s%d, v5''' % (sRX, sRX, sRX, sRX, sRX, sDl, sDl))
        a('s_waitcnt vmcnt(8)\ns_barrier')
        self.stamp(1)
        reads(F0, 0, 0)
        def body(D):
            reads(F1, 1, 1)
            a('s_waitcnt lgkmcnt(9)'); mfmas(F0)
            if D is None:
                a('s_waitcnt vmcnt(6)\ns_barrier'); dma_w(); dma_x()
            elif D == 6:
                a('s_waitcnt vmcnt(6)\ns_barrier')
                self.load_params()
            else:
                a('s_waitcnt vmcnt(13)\ns_barrier')
            next_w(); reads(F0, 0, 2)
            a('s_waitcnt lgkmcnt(9)'); mfmas(F1)
            reads(F1, 1, 3)
            a('s_waitcnt lgkmcnt(9)'); mfmas(F0)
            if D is None:
                a('s_waitcnt vmcnt(6)\ns_barrier'); dma_w()
            elif D == 6:
                self.wave0(lambda: (self.get_nonce(), self.poll(WS_FS1, None, 32)))
                a('s_waitcnt vmcnt(10)\ns_barrier')
                a('''v_bfe_u32 v10, v0, 4, 1
v_and_b32 v11, 15, v0
v_lshlrev_b32 v11, 2, v11
v_lshl_or_b32 v10, v10, 8, v11
s_lshl_b32 s64, s%d, 1
s_add_u32 s64, s64, s%d
s_lshl_b32 s64, s64, 9
s_add_u32 s64, s64, %d''' % (sJ, sT, WS_CS))
                for m in range(4): a('buffer_load_dword v%d, v10, %s, s64 offen offset:%d sc1' % (24 + m, srd(sWS), 64 * m))
                a('''v_and_b32 v11, 31, v0
v_lshlrev_b32 v11, 3, v11
s_lshl_b32 s64, s%d, 2
s_and_b32 s65, s%d, 3
s_add_u32 s64, s64, s65
s_lshl_b32 s64, s64, 8
s_add_u32 s64, s64, %d
buffer_load_dwordx2 v[28:29], v11, %s, s64 offen sc1''' % (sI, sWave, WS_STATS, srd(sWS)))
            if D != 7:
                next_w(); next_x(); reads(F0, 0, 0)
                a('s_waitcnt lgkmcnt(9)')
            else:
                a('s_waitcnt lgkmcnt(0)')
            mfmas(F1)
        a('s_mov_b32 s%d, 6\nL_g1:' % sD)
        body(None)
        a('s_sub_u32 s%d, s%d, 1\ns_cmp_lg_u32 s%d, 0\ns_cbranch_scc1 L_g1' % (sD, sD, sD))
        body(6); body(7)
        self.stamp(2)
        AP, BP = F0, F0 + 16
        a('''s_waitcnt vmcnt(0)
s_mov_b32 s64, 0xffff0000
s_mov_b32 s65, 0x07060302
v_xor_b32 v10, 0x80000000, v28
v_cmp_gt_u32 vcc, 32, v0
v_cndmask_b32 v10, 0, v10, vcc
v_lshrrev_b32 v%d, 16, v10
v_or_b32 v%d, v10, v%d
v_mov_b32 v%d, 0
v_mov_b32 v%d, 0''' % (BP + 1, BP, BP + 1, BP + 2, BP + 3))
        for m in range(4):
            a('''v_and_b32 v11, s64, v%d
v_sub_f32 v11, v%d, v11
v_and_b32 v12, s64, v11
v_sub_f32 v12, v11, v12
v_perm_b32 v%d, v11, v%d, s65
v_lshrrev_b32 v%d, 16, v12
v_mov_b32 v%d, 0
v_mov_b32 v%d, 0''' % (24 + m, 24 + m, AP + 4 * m, 24 + m, AP + 4 * m + 1, AP + 4 * m + 2, AP + 4 * m + 3))
        for m in range(4):
            a('v_mfma_f32_32x32x16_bf16 %s, %s, %s, %s' % (v(ACC + 16 * m, 16), v(AP + 4 * m, 4), v(BP, 4), v(ACC + 16 * m, 16)))
        a('''s_lshl_b32 s64, s%d, 2
s_and_b32 s65, s%d, 3
s_add_u32 s64, s64, s65
s_mul_i32 s64, s64, 112
s_lshl_b32 s65, s%d, 3
s_add_u32 s64, s64, s65
s_lshl_b32 s65, s%d, 2
s_add_u32 s64, s64, s65
s_lshl_b32 s64, s64, 10
s_add_u32 s64, s64, %d
v_lshlrev_b32 v10, 4, v0''' % (sI, sWave, sJ, sT, WS_H))
        for m in range(4):
            A = ACC + 16 * m; O = F1 + 4 * m
            for r in range(8):
                a('v_max_f32 v%d, 0, v%d\nv_mul_f32 v%d, v29, v%d' % (A + r, A + r, A + 8 + r, A + 8 + r))
            for r in range(8): a('v_mul_f32 v%d, v%d, v%d' % (A + r, A + r, A + 8 + r))
            for r in range(4): a('v_cvt_pk_bf16_f32 v%d, v%d, v%d' % (O + r, A + 2 * r, A + 2 * r + 1))
            a('buffer_store_dwordx4 %s, v10, %s, s64 offen offset:%d sc1' % (v(O, 4), srd(sWS), 1024 * m))
        a('s_mul_i32 s77, s%d, 14\ns_add_u32 s77, s77, s%d' % (sI, sJ))
        self.stamp(3)
        self.wave0(lambda: self.poll(WS_FS2, None, 32))
        a('s_branch L_common')

    def role_s(self):
        a = self.a
        sQ, sLine = 66, 67
        X, WB, M = 32, 64, 128
        a('''L_role_s:
s_mov_b32 s77, -1
s_lshl_b32 s%d, s%d, 2
s_add_u32 s%d, s%d, s%d
s_lshl_b32 s64, s%d, 3
s_add_u32 s64, s64, s%d
s_lshl_b32 s64, s64, 13
s_add_u32 s65, s64, 4096
v_lshlrev_b32 v1, 4, v0''' % (sQ, sXcd, sQ, sQ, sSlot, sQ, sWave))
        for r in range(8):
            a('buffer_load_dwordx4 %s, v1, %s, s%d offen offset:%d' % (v(X + 4 * r, 4), srd(sX), 64 + r // 4, 1024 * (r % 4)))
        a('''s_lshr_b32 s64, s%d, 1
s_lshl_b32 s64, s64, 2
s_add_u32 s68, s64, s%d
s_min_u32 s64, s68, 13
s_and_b32 s65, s%d, 1
s_mul_i32 s65, s65, 14
s_add_u32 s%d, s64, s65
v_lshrrev_b32 v2, 3, v0
v_mul_u32_u24 v2, 3584, v2
v_and_b32 v3, 7, v0
v_lshl_add_u32 v2, v3, 4, v2
s_and_b32 s64, s%d, 3
s_mul_i32 s64, s64, %d
s_lshl_b32 s65, s%d, 7
s_add_u32 s64, s64, s65''' % (sXcd, sSlot, sXcd, sLine, sWave, 128 * 3584, sLine))
        for e in range(16):
            a('buffer_load_dwordx4 %s, v2, %s, s64 offen\ns_add_u32 s64, s64, %d' % (v(WB + 4 * e, 4), srd(sW), 8 * 3584))
        self.load_params()
        l = self.L('mknonce')
        a('''s_or_b32 s64, s2, s%d
s_cmp_lg_u32 s64, 0
s_cbranch_scc1 %s
v_mov_b32 v25, 0
buffer_load_dword v24, v25, %s, 0 offen
s_waitcnt vmcnt(0)
v_add_u32 v24, 1, v24
v_max_u32 v24, 1, v24
s_mov_b64 exec, 1
buffer_store_dword v24, v25, %s, 0 offen sc1
buffer_store_dword v24, v25, %s, 0 offen sc1
s_mov_b64 exec, -1
%s:''' % (sWave, l, srd(sWS), srd(sDBG), srd(sWS), l))
        ONES = 4
        for r in range(4): a('v_mov_b32 v%d, 0x3f803f80' % (ONES + r))
        a('v_mov_b32 v8, 1.0\ns_mov_b32 s69, 0xffff0000\ns_waitcnt vmcnt(24)')
        for r in range(8):
            a('v_mfma_f32_16x16x32_bf16 %s, %s, %s, 0' % (v(M + 4 * r, 4), v(ONES, 4), v(X + 4 * r, 4)))
        U = 160
        for r in range(8):
            for k in range(4):
                a('v_lshlrev_b32 v%d, 16, v%d\nv_and_b32 v%d, s69, v%d' % (U + 8 * r + 2 * k, X + 4 * r + k, U + 8 * r + 2 * k + 1, X + 4 * r + k))
        def butterfly(dst):
            for sh in (8, 4, 2):
                for r in range(8): a('v_add_f32_dpp v%d, v%d, v%d row_ror:%d row_mask:0xf bank_mask:0xf' % (M + 4 * r, M + 4 * r, M + 4 * r, sh))
            for r in range(8):
                a('v_add_f32_dpp v%d, v%d, v%d row_ror:1 row_mask:0x%x bank_mask:0x%x' % (dst, M + 4 * r, M + 4 * r, 1 << (r >> 2), 1 << (r & 3)))
        a('v_mov_b32 v9, 0\nv_mov_b32 v12, 0')
        butterfly(9)
        a('''v_mul_f32 v9, 0x3b000000, v9
v_cvt_pk_bf16_f32 v10, v9, v9
v_and_b32 v10, s69, v10
v_sub_f32 v11, v9, v10''')
        for r in range(8): a('v_readlane_b32 s%d, v10, %d' % (80 + 2 * r, 4 * r))
        for r in range(8):
            for k in range(4):
                a('v_pk_add_f32 %s, %s, s[%d:%d] op_sel_hi:[1,0] neg_lo:[0,1] neg_hi:[0,1]' % (v(U + 8 * r + 2 * k, 2), v(U + 8 * r + 2 * k, 2), 80 + 2 * r, 81 + 2 * r))
        for r in range(8):
            P = X + 4 * r
            a('v_pk_mul_f32 %s, %s, %s' % (v(P, 2), v(U + 8 * r, 2), v(U + 8 * r, 2)))
            for k in range(1, 4):
                a('v_pk_fma_f32 %s, %s, %s, %s' % (v(P, 2), v(U + 8 * r + 2 * k, 2), v(U + 8 * r + 2 * k, 2), v(P, 2)))
            a('v_add_f32 v%d, v%d, v%d' % (P, P, P + 1))
        for r in range(8):
            a('v_mfma_f32_16x16x4_f32 %s, v8, v%d, 0' % (v(M + 4 * r, 4), X + 4 * r))
        for r in range(8):
            for k in range(4): a('v_cvt_pk_bf16_f32 v%d, v%d, v%d' % (U + 8 * r + k, U + 8 * r + 2 * k, U + 8 * r + 2 * k + 1))
        butterfly(12)
        a('''v_mul_f32 v12, 0x3b000000, v12
v_fma_f32 v12, -v11, v11, v12
v_max_f32 v12, 0, v12
v_cvt_pk_bf16_f32 v12, v12, v12
v_and_b32 v12, s69, v12
v_add_f32 v12, 0x3727c5ac, v12
v_cvt_pk_bf16_f32 v12, v12, v12
v_and_b32 v12, s69, v12
v_sqrt_f32 v12, v12
v_cvt_pk_bf16_f32 v12, v12, v12
v_and_b32 v12, s69, v12
v_rcp_f32 v13, v12
v_fma_f32 v14, -v12, v13, 1.0
v_fma_f32 v13, v14, v13, v13
v_mul_f32 v11, v13, v13
v_lshlrev_b32 v14, 1, v0
s_lshl_b32 s64, s%d, 3
s_add_u32 s64, s64, s%d
s_lshl_b32 s64, s64, 6
s_add_u32 s64, s64, %d
s_mov_b64 exec, 0x11111111
buffer_store_dwordx2 v[10:11], v14, %s, s64 offen sc1
s_mov_b64 exec, -1''' % (sQ, sWave, WS_STATS, srd(sWS)))
        for r in range(8): a('v_readlane_b32 s%d, v13, %d' % (80 + 2 * r, 4 * r))
        a('v_and_b32 v9, 15, v0\nv_mov_b32 v12, 0x3f80\nv_mov_b32 v13, 0x3f800000')
        for k in range(4):
            a('''v_cmp_eq_u32 vcc, %d, v9
v_cndmask_b32 v%d, 0, v12, vcc
v_cmp_eq_u32 vcc, %d, v9
v_cndmask_b32 v%d, v%d, v13, vcc''' % (2 * k, ONES + k, 2 * k + 1, ONES + k, ONES + k))
        a('s_waitcnt vmcnt(9)')
        for e in range(16):
            a('v_mfma_f32_16x16x32_bf16 %s, %s, %s, %s' % (v(M, 4), v(ONES, 4), v(WB + 4 * e, 4), '0' if e == 0 else v(M, 4)))
        a('''v_and_b32 v9, 7, v0
v_lshrrev_b32 v12, 4, v0
v_lshlrev_b32 v12, 4, v12
v_lshl_or_b32 v9, v9, 5, v12
s_lshl_b32 s64, s%d, 8
s_add_u32 s64, s64, %d
v_add_u32 v9, s64, v9''' % (sWave, CSP))
        for r in range(4): a('v_add_f32_dpp v%d, v%d, v%d row_ror:8 row_mask:0xf bank_mask:0xf' % (M + r, M + r, M + r))
        a('''s_mov_b64 exec, 0x00ff00ff
ds_write_b128 v9, %s
s_mov_b64 exec, -1
s_waitcnt lgkmcnt(0)
s_barrier''' % v(M, 4))
        l = self.L('nocs')
        a('''s_cmp_ge_u32 s%d, 2
s_cbranch_scc1 %s
s_cmp_ge_u32 s68, 14
s_cbranch_scc1 %s
s_lshl_b32 s64, s%d, 10
s_add_u32 s64, s64, %d
v_lshlrev_b32 v9, 2, v0
v_add_u32 v12, s64, v9
ds_read_b32 v%d, v12
ds_read_b32 v%d, v12 offset:256
ds_read_b32 v%d, v12 offset:512
ds_read_b32 v%d, v12 offset:768
s_lshl_b32 s64, s%d, 1
s_add_u32 s64, s64, s%d
s_lshl_b32 s64, s64, 8
s_add_u32 s64, s64, %d
s_waitcnt lgkmcnt(0)
v_add_f32 v%d, v%d, v%d
v_add_f32 v%d, v%d, v%d
v_add_f32 v%d, v%d, v%d
buffer_store_dword v%d, v9, %s, s64 offen sc1
%s:''' % (sWave, l, l, sWave, CSP, M, M + 1, M + 2, M + 3, sLine, sWave, WS_CS, M, M, M + 1, M + 2, M + 2, M + 3, M, M, M + 2, M, srd(sWS), l))
        for r in range(8):
            B = U + 8 * r
            for k in (3, 2, 1, 0):
                a('v_and_b32 v%d, s69, v%d\nv_lshlrev_b32 v%d, 16, v%d' % (B + 2 * k + 1, B + k, B + 2 * k, B + k))
            for k in range(4):
                a('v_pk_mul_f32 %s, %s, s[%d:%d] op_sel_hi:[1,0]' % (v(B + 2 * k, 2), v(B + 2 * k, 2), 80 + 2 * r, 81 + 2 * r))
        T = WB
        for e in range(8):
            for p in range(4):
                a('v_cvt_pk_bf16_f32 v%d, v%d, v%d' % (T + 4 * e + p, U + 16 * p + e, U + 16 * p + 8 + e))
        a('''v_and_b32 v9, 7, v0
v_xor_b32 v9, s%d, v9
v_lshlrev_b32 v9, 4, v9
v_lshl_or_b32 v9, v0, 10, v9''' % sWave)
        for e in range(8): a('ds_write_b128 v9, %s offset:%d' % (v(T + 4 * e, 4), ST + 128 * e))
        self.wave0(self.get_nonce)
        a('s_waitcnt vmcnt(0) lgkmcnt(0)\ns_barrier')
        self.wave0(lambda: self.flag(WS_FS1, sQ))
        a('''v_lshlrev_b32 v9, 4, v0
s_lshl_b32 s64, s%d, 13
v_add_u32 v9, s64, v9
v_lshrrev_b32 v12, 3, v0
v_and_b32 v13, 7, v0
v_lshlrev_b32 v13, 4, v13
v_lshl_or_b32 v12, v12, 12, v13
s_lshl_b32 s64, s%d, 18
s_lshl_b32 s65, s%d, 7
s_add_u32 s64, s64, s65
s_add_u32 s64, s64, %d''' % (sWave, sWave, sQ, WS_XNT))
        for e in range(8):
            a('v_xor_b32 v13, %d, v9\nds_read_b128 %s, v13 offset:%d' % (16 * e, v(T + 4 * e, 4), ST + 1024 * e))
        for e in range(8):
            a('s_waitcnt lgkmcnt(%d)\nbuffer_store_dwordx4 %s, v12, %s, s64 offen sc1\ns_add_u32 s64, s64, 32768' % (7 - e, v(T + 4 * e, 4), srd(sWS)))
        a('s_waitcnt vmcnt(0)\ns_barrier')
        self.wave0(lambda: (self.flag(WS_FS2, sQ), self.poll(WS_FS2, None, 32)))
        self.stamp(3)

    def wd_setup(self):
        a = self.a
        a('''v_lshrrev_b32 v10, 3, v0
v_bfe_u32 v11, v0, 4, 1
v_lshlrev_b32 v11, 2, v11
v_and_b32 v12, 7, v0
v_xor_b32 v11, v11, v12
v_lshlrev_b32 v11, 4, v11
v_lshl_or_b32 v1, v10, 10, v11
s_mul_i32 s70, s%d, %d
s_lshr_b32 s64, s%d, 2
s_lshl_b32 s64, s64, 7
s_add_u32 s70, s70, s64
s_lshl_b32 s71, s%d, 13
s_add_u32 s71, s71, %d
v_bfe_u32 v10, v0, 2, 2
v_lshrrev_b32 v11, 5, v0
v_lshl_add_u32 v11, v11, 2, v10
v_lshlrev_b32 v11, 7, v11
v_lshrrev_b32 v10, 1, v10
v_lshl_or_b32 v11, v10, 6, v11
v_bfe_u32 v10, v0, 4, 1
v_lshl_or_b32 v11, v10, 5, v11
v_and_b32 v10, 3, v0
v_lshl_or_b32 v11, v10, 3, v11
v_add_u32 v2, s71, v11
v_xor_b32 v3, 64, v2''' % (sWave, 224 * 1024, sSlot, sWave, WDZ))
    def wd_issue(self, rnd):
        a = self.a
        for e in range(8 if rnd < 3 else 4):
            a('s_add_u32 m0, s71, %d\nbuffer_load_dwordx4 v1, %s, s70 offen lds\ns_add_u32 s70, s70, 8192' % (1024 * e, srd(sWD)))
    def wd_read(self, rnd):
        a = self.a
        for k in range(4 if rnd < 3 else 2):
            for dh in range(2):
                R = 144 + 8 * (4 * rnd + k) + 4 * dh
                a('ds_read_b64_tr_b16 %s, v%d offset:%d' % (v(R, 2), 2 + dh, 2048 * k))
                a('ds_read_b64_tr_b16 %s, v%d offset:%d' % (v(R + 2, 2), 2 + dh, 2048 * k + 1024))

    def cexp(self, o, mult, t):
        self.a('''v_mul_f32 v%d, %s, v16
v_mul_f32 v%d, %s, v17
v_exp_f32 v%d, v%d
v_fract_f32 v%d, v%d
v_cos_f32 v%d, v%d
v_sin_f32 v%d, v%d
v_mul_f32 v%d, v%d, v%d
v_mul_f32 v%d, v%d, v%d''' % (t, mult, t + 1, mult, t, t, t + 1, t + 1, o, t + 1, o + 1, t + 1, o, t, o, o + 1, t, o + 1))
    def cmul(self, o, x, y):
        assert o != x and o != y
        self.a('''v_mul_f32 v%d, v%d, v%d
v_mul_f32 v%d, v%d, v%d
v_fma_f32 v%d, -v%d, v%d, v%d
v_fmac_f32 v%d, v%d, v%d''' % (o, x, y, o + 1, x, y + 1, o, x + 1, y + 1, o, o + 1, x + 1, y))
    def common(self):
        a = self.a
        a('L_common:\ns_waitcnt lgkmcnt(0)\ns_barrier')
        self.wd_setup(); self.wd_issue(0)
        a('''s_and_b32 s72, s%d, 1
s_lshl_b32 s64, s2, 1
s_add_u32 s73, s64, s72
s_lshl_b32 s64, s73, 12
s_lshr_b32 s65, s%d, 1
s_lshl_b32 s65, s65, 10
s_add_u32 s64, s64, s65
s_add_u32 s64, s64, %d
v_lshlrev_b32 v4, 4, v0
buffer_load_dwordx4 v[28:31], v4, %s, s64 offen sc1''' % (sWave, sWave, WS_XNT, srd(sWS)))
        for k in range(8): a('v_lshlrev_b32 v%d, 16, v%d' % (16 + k, 16 + k))
        a('''s_mov_b32 s64, 0x%x
v_mul_f32 v5, s64, v22
v_fma_f32 v6, v22, s64, -v5
v_fmamk_f32 v6, v22, 0x%x, v6
v_exp_f32 v5, v5
v_mul_f32 v6, 0x%x, v6
v_fma_f32 v5, v5, v6, v5
v_cvt_pk_bf16_f32 v5, v5, v5
v_and_b32 v5, 0xffff0000, v5
v_mul_f32 v16, v5, v16
v_mul_f32 v17, v5, v17
v_mul_f32 v16, s64, v16
v_mul_f32 v17, 0x%x, v17
s_lshl_b32 s64, s72, 2
s_lshr_b32 s65, s%d, 2
s_lshl_b32 s65, s65, 1
s_add_u32 s64, s64, s65
s_bfe_u32 s65, s%d, 0x10001
s_add_u32 s64, s64, s65
s_mul_i32 s64, s64, 9216
v_lshl_add_u32 v6, v0, 2, s64
s_cmp_ge_u32 s%d, 4
s_cbranch_scc1 L_genv''' % (L2E, L2E_LO, LN2, INV2PI, sWave, sWave, sWave))
        def put(x, rows):
            a('v_cvt_pk_bf16_f32 v7, v%d, v%d' % (x, x + 1))
            for r in rows: a('ds_write_b32 v6, v7 offset:%d' % (TAB + 288 * r))
        W1, W2, W4, W8, W256, Bs, P, Q, T = 32, 34, 36, 38, 40, 42, 46, 48, 50
        a('''v_mul_f32 v18, v5, v18
v_mul_f32 v19, v5, v19
v_sub_f32 v17, 0, v17''')
        self.cexp(W1, '1.0', T); self.cexp(W256, '0x43800000', T)
        self.cmul(Bs, 18, 20)
        a('v_sub_f32 v%d, 0, v%d' % (Bs + 1, Bs + 1))
        self.cmul(W2, W1, W1); self.cmul(W4, W2, W2); self.cmul(W8, W4, W4)
        put(Bs, [0])
        src = Bs
        for r in range(1, 8):
            dst = P if src != P else Q
            self.cmul(dst, src, W1); put(dst, [r]); src = dst
        cur = Bs
        for s in range(1, 8):
            nxt = Bs + 2 if cur == Bs else Bs
            self.cmul(nxt, cur, W256); cur = nxt
            if s == 1:
                put(cur, [8, 9]); self.cmul(P, cur, W2); put(P, [10]); self.cmul(Q, cur, W4); put(Q, [11, 12, 13])
                self.cmul(P, Q, W2); put(P, [14]); self.cmul(Q, cur, W8); put(Q, [15])
            elif s < 4:
                b = 16 + 4 * (s - 2)
                put(cur, [b]); self.cmul(P, cur, W4); put(P, [b + 1]); self.cmul(Q, cur, W8); put(Q, [b + 2, b + 3])
            else:
                b = 24 + 2 * (s - 4)
                put(cur, [b]); self.cmul(P, cur, W8); put(P, [b + 1])
        a('s_branch L_gendone\nL_genv:')
        self.cexp(W8, '0x41000000', T)
        a('v_mov_b32 v%d, 1.0\nv_mov_b32 v%d, 0\ns_mov_b32 s64, 8\nL_genv_loop:' % (P, P + 1))
        for r in range(4):
            x, y = (P, Q) if r % 2 == 0 else (Q, P)
            put(x, [r]); self.cmul(y, x, W8)
        a('''v_add_u32 v6, %d, v6
s_sub_u32 s64, s64, 1
s_cmp_lg_u32 s64, 0
s_cbranch_scc1 L_genv_loop
L_gendone:''' % (4 * 288))
        self.stamp(4)
        a('''s_mul_i32 s64, s72, 4608
s_lshr_b32 s65, s%d, 1
s_lshl_b32 s65, s65, 10
s_add_u32 s64, s64, s65
s_add_u32 s64, s64, %d
v_add_u32 v5, s64, v4
s_waitcnt vmcnt(0)
ds_write_b128 v5, v[28:31]''' % (sWave, UL[0] + 512))
        self.wd_read(0)
        for r in range(4): a('v_mov_b32 v%d, 0' % (28 + r))
        l = self.L('nopad')
        a('''s_cmp_ge_u32 s%d, 2
s_cbranch_scc1 %s
s_mov_b32 exec_hi, 0
v_subrev_u32 v5, 512, v5
ds_write_b128 v5, v[28:31]
s_mul_i32 s64, s72, 4352
s_add_u32 s64, s64, %d
v_add_u32 v5, s64, v4
s_mov_b64 exec, 15
ds_write_b128 v5, v[28:31]
s_mov_b64 exec, -1
%s:
s_waitcnt lgkmcnt(0)''' % (sWave, l, C0[0] + 4096, l))
        self.wd_issue(1)
        a('s_barrier')
        l = self.L('nohflag')
        a('s_cmp_eq_u32 s77, -1\ns_cbranch_scc1 %s' % l)
        self.wave0(lambda: self.flag(WS_FH, 77))
        a(l + ':')
        FA, FB, D = 32, 64, 96
        a('''v_and_b32 v8, 15, v0
v_lshrrev_b32 v9, 4, v0
v_mul_u32_u24 v5, 288, v8
v_lshl_add_u32 v5, v9, 4, v5
s_mul_i32 s64, s72, %d
s_lshr_b32 s65, s%d, 2
s_mul_i32 s65, s65, %d
s_add_u32 s65, s65, s64
v_add_u32 v6, s65, v5
s_bfe_u32 s74, s%d, 0x10001
s_mul_i32 s65, s74, %d
s_add_u32 s65, s65, s64
s_add_u32 s65, s65, %d
v_add_u32 v7, s65, v5''' % (4 * 9216, sWave, 16 * 288, sWave, 16 * 288, 2 * 9216))
        for m in range(8):
            off = TAB + (m >> 2) * 9216 + (m & 3) * 64
            a('ds_read_b128 %s, v6 offset:%d\nds_read_b128 %s, v7 offset:%d' % (v(FA + 4 * m, 4), off, v(FB + 4 * m, 4), off))
        for m in range(8):
            a('s_waitcnt lgkmcnt(%d)' % (14 - 2 * m))
            a('v_mfma_f32_16x16x32_bf16 %s, %s, %s, %s' % (v(D, 4), v(FA + 4 * m, 4), v(FB + 4 * m, 4), '0' if m == 0 else v(D, 4)))
        a('''s_lshl_b32 s64, s74, 4
v_add_u32 v8, s64, v8
s_mul_i32 s64, s72, 4352
s_cmp_ge_u32 s%d, 4
s_cbranch_scc1 L_k_hi
v_lshrrev_b32 v5, 1, v9
v_lshlrev_b32 v5, 9, v5
v_lshl_add_u32 v5, v8, 4, v5
v_and_b32 v6, 1, v9
v_lshl_add_u32 v5, v6, 3, v5
s_add_u32 s64, s64, %d
v_sub_u32 v5, s64, v5
v_cvt_pk_bf16_f32 v32, v%d, v%d
v_cvt_pk_bf16_f32 v33, v%d, v%d
ds_write_b64 v5, v[32:33]
s_branch L_k_done
L_k_hi:
v_cmp_gt_u32 vcc, 32, v0
v_add_u32 v5, 2, v9
v_lshlrev_b32 v6, 1, v9
v_cndmask_b32 v5, v6, v5, vcc
v_lshlrev_b32 v5, 9, v5
v_lshl_add_u32 v5, v8, 4, v5
s_add_u32 s64, s64, %d
v_sub_u32 v5, s64, v5
v_mov_b32 v6, 0x3020302
v_mov_b32 v7, 0x5040504
v_mov_b32 v10, 0x1000302
v_mov_b32 v11, 0x1000100
v_cndmask_b32 v12, v6, v7, vcc
v_cndmask_b32 v13, v11, v10, vcc
v_and_b32 v14, 33, v0
v_cmp_eq_u32 vcc, 32, v14
v_cndmask_b32 v14, v6, v10, vcc
v_cvt_pk_bf16_f32 v40, v%d, v%d
v_cvt_pk_bf16_f32 v41, v%d, v%d
v_perm_b32 v32, v41, v40, v12
v_perm_b32 v33, v41, v40, v14
v_perm_b32 v34, v41, v40, v13
v_perm_b32 v35, v41, v40, v11
v_perm_b32 v36, v41, v41, v6
v_perm_b32 v37, v41, v41, v14
v_perm_b32 v38, v41, v41, v11
v_perm_b32 v39, v41, v41, v11
ds_write_b128 v5, v[32:35] offset:512
s_mov_b32 exec_lo, 0
ds_write_b128 v5, v[36:39]
s_mov_b64 exec, -1
L_k_done:
s_waitcnt lgkmcnt(0)
s_barrier''' % (sWave, C0[0] + 2 * 2044, D + 3, D + 2, D + 1, D, C0[0] + 2 * 2040 - 512, D, D + 1, D + 2, D + 3))
        a('''s_lshr_b32 s64, s%d, 1
s_lshl_b32 s64, s64, 10
v_add_u32 v5, s64, v4
s_mul_i32 s64, s72, 4352
s_add_u32 s64, s64, %d
v_add_u32 v6, s64, v5
ds_read_b128 v[32:35], v6
ds_read_b64 v[36:37], v6 offset:16
s_mul_i32 s64, s72, %d
v_add_u32 v5, s64, v5
v_add_u32 v6, s64, v4
s_mov_b64 exec, 3
ds_write_b128 v6, v[28:31] offset:%d
ds_write_b128 v6, v[28:31] offset:%d
ds_write_b128 v6, v[28:31] offset:%d
s_mov_b64 exec, -1
s_waitcnt lgkmcnt(3)''' % (sWave, C0[0], 3 * 4352, CC(0, 1) + 4096, CC(0, 2) + 4096, CC(0, 3) + 4096))
        for k in range(4):
            a('v_alignbit_b32 v%d, v%d, v%d, 16\nv_mov_b32 v%d, v%d\nv_alignbit_b32 v%d, v%d, v%d, 16' % (40 + k, 33 + k, 32 + k, 44 + k, 33 + k, 48 + k, 34 + k, 33 + k))
        for c in (1, 2, 3): a('ds_write_b128 v5, %s offset:%d' % (v(36 + 4 * c, 4), CC(0, c)))
        a('s_waitcnt vmcnt(0)')
        self.wd_read(1)
        a('s_waitcnt lgkmcnt(0)')
        self.wd_issue(2)
        a('s_barrier')
        self.stamp(5)
        if self.dump == 'K':
            a('''s_lshl_b32 s64, s2, 15
s_add_u32 s64, s64, %d
s_lshl_b32 s65, s%d, 12
s_add_u32 s64, s64, s65''' % (WS_DUMP, sWave))
            for c in range(4):
                for dd in range(2):
                    l = self.L('dmp')
                    a('s_cmp_lg_u32 s%d, %d\ns_cbranch_scc1 %s' % (sWave, dd * 4 + c, l))
                    for q in range(4):
                        a('v_add_u32 v5, %d, v4\nds_read_b128 v[32:35], v5\ns_waitcnt lgkmcnt(0)\nbuffer_store_dwordx4 v[32:35], v4, %s, s64 offen offset:%d\ns_waitcnt vmcnt(0)' % ((C0[dd] if c == 0 else CC(dd, c)) + 1024 * q, srd(sWS), 1024 * q))
                    a(l + ':')
        A, B, Y = 32, 64, 96
        a('''v_and_b32 v8, 15, v0
v_lshrrev_b32 v9, 4, v0
v_not_b32 v10, v8
v_and_b32 v10, 3, v10
v_mul_u32_u24 v11, %d, v10
s_mul_i32 s64, s72, %d
v_add_u32 v11, s64, v11
v_subrev_u32 v11, 4352, v11
s_mul_i32 s64, s72, 4352
s_add_u32 s64, s64, %d
v_mov_b32 v12, s64
v_cmp_eq_u32 vcc, 0, v10
v_cndmask_b32 v11, v11, v12, vcc
v_lshlrev_b32 v12, 3, v9
v_sub_u32 v12, v12, v8
v_sub_u32 v12, v12, v10
s_lshr_b32 s75, s%d, 2
s_lshl_b32 s64, s75, 8
s_sub_u32 s65, %d, s64
v_lshl_add_u32 v5, v12, 1, v11
v_add_u32 v5, s65, v5
v_lshlrev_b32 v12, 5, v8
v_lshl_add_u32 v12, v9, 4, v12
s_mul_i32 s65, s72, 4608
s_add_u32 s65, s65, %d
s_sub_u32 s65, s65, s64
v_add_u32 v6, s65, v12
s_mov_b32 s76, 4''' % (4352 + 64, 3 * 4352, C0[0], sWave, 2 * 2031 - 3584, UL[0] + 480))
        for r in range(16): a('v_mov_b32 v%d, 0' % (Y + r))
        a('s_cmp_eq_u32 s74, 1\ns_cbranch_scc1 L_conv1')
        for var, alphas in ((0, (0, 3, 4, 7)), (1, (1, 2, 5, 6))):
            a('L_conv%d:' % var)
            amax = alphas[-1]
            order = []
            for idx, al in enumerate(alphas):
                for be in range(al + 1): order.append((max(be, al - be), idx, be, al - be))
            order.sort()
            for q in range(amax + 1):
                a('ds_read_b64 %s, v5 offset:%d\nds_read_b64 %s, v5 offset:%d\nds_read_b128 %s, v6 offset:%d' % (
                    v(A + 4 * q, 2), 512 * (7 - q), v(A + 4 * q + 2, 2), 512 * (7 - q) + 8, v(B + 4 * q, 4), 512 * q))
                if q >= 4:
                    pass
            done = -1
            for lvl, idx, be, ga in order:
                if lvl > done:
                    a('s_waitcnt lgkmcnt(%d)' % min(15, 3 * (amax - lvl))); done = lvl
                a('v_mfma_f32_16x16x32_bf16 %s, %s, %s, %s' % (v(Y + 4 * idx, 4), v(A + 4 * be, 4), v(B + 4 * ga, 4), v(Y + 4 * idx, 4)))
            a('''v_subrev_u32 v5, 64, v5
v_subrev_u32 v6, 64, v6
s_sub_u32 s76, s76, 1
s_cmp_lg_u32 s76, 0
s_cbranch_scc1 L_conv%d''' % var)
            if var == 0: a('s_branch L_convdone')
        a('L_convdone:')
        self.stamp(6)
        a('s_waitcnt vmcnt(0)')
        self.wd_read(2)
        l = self.L('swap')
        a('s_cmp_eq_u32 s75, 0\ns_nop 7\ns_cbranch_scc1 %s' % l)
        for r in range(8): a('v_swap_b32 v%d, v%d' % (Y + r, Y + 8 + r))
        a('''%s:
s_lshl_b32 s64, s%d, 11
s_add_u32 s64, s64, %d
v_add_u32 v5, s64, v4
v_xor_b32 v6, 8192, v5
ds_write_b128 v5, %s
ds_write_b128 v5, %s offset:1024
s_waitcnt lgkmcnt(0)''' % (l, sWave, RED, v(Y + 8, 4), v(Y + 12, 4)))
        self.wd_issue(3)
        a('''s_barrier
ds_read_b128 v[32:35], v6
ds_read_b128 v[36:39], v6 offset:1024
s_lshl_b32 s64, s75, 2
s_add_u32 s65, s64, s74
s_sub_u32 s66, 3, s74
s_add_u32 s66, s66, s64
v_lshlrev_b32 v10, 5, v8
v_lshl_or_b32 v10, v9, 3, v10
s_mul_i32 s64, s72, 4608
s_add_u32 s64, s64, %d
v_add_u32 v11, s64, v10
s_lshl_b32 s65, s65, 9
s_lshl_b32 s66, s66, 9
v_add_u32 v12, s65, v11
v_add_u32 v13, s66, v11
ds_read_b64 v[40:41], v12
ds_read_b64 v[42:43], v13
s_lshl_b32 s64, s%d, 10
s_add_u32 s64, s64, %d
v_add_u32 v10, s64, v10
v_add_u32 v11, s64, v4
s_mov_b32 s64, 0xffff0000
s_waitcnt lgkmcnt(0)''' % (UL[0] + 512, sWave, YST))
        for t in range(2):
            for r in range(4): a('v_add_f32 v%d, v%d, v%d' % (Y + 4 * t + r, Y + 4 * t + r, 32 + 4 * t + r))
            for k in range(2):
                a('''v_lshlrev_b32 v44, 16, v%d
v_and_b32 v45, s64, v%d
v_fmac_f32 v%d, v44, v23
v_fmac_f32 v%d, v45, v23
v_cvt_pk_bf16_f32 v%d, v%d, v%d''' % (40 + 2 * t + k, 40 + 2 * t + k, Y + 4 * t + 2 * k, Y + 4 * t + 2 * k + 1, 46 + 2 * t + k, Y + 4 * t + 2 * k, Y + 4 * t + 2 * k + 1))
            a('ds_write_b64 v10, %s offset:%d' % (v(46 + 2 * t, 2), 512 * t))
        a('''s_waitcnt lgkmcnt(0)
ds_read_b128 v[32:35], v11
v_and_b32 v12, 31, v0
v_lshlrev_b32 v12, 4, v12
v_mov_b32 v13, s65
v_mov_b32 v14, s66
v_cmp_gt_u32 vcc, 32, v0
v_cndmask_b32 v13, v14, v13, vcc
v_add_u32 v12, v12, v13
s_lshl_b32 s64, s73, 12
s_add_u32 s64, s64, %d
s_waitcnt lgkmcnt(0)
buffer_store_dwordx4 v[32:35], v12, %s, s64 offen sc1
s_waitcnt vmcnt(0)''' % (WS_YT, srd(sWS)))
        self.wd_read(3)
        a('''s_and_b32 s66, s%d, 3
s_lshl_b32 s64, s%d, 2
s_add_u32 s66, s66, s64
s_lshr_b32 s67, s66, 1
s_mul_i32 s67, s67, 14
s_lshr_b32 s68, s%d, 2''' % (sSlot, sXcd, sSlot))
        self.wave0(lambda: self.poll(WS_FH, 67, 14))
        a('s_waitcnt lgkmcnt(0)\ns_barrier')
        self.wave0(lambda: self.flag(WS_FY, 2))
        self.stamp(7)

    def gemm2(self):
        a = self.a
        H, ACC, WD = 32, 16, 144
        a('''s_lshl_b32 s64, s66, 1
s_mul_i32 s64, s64, 112
s_mul_i32 s65, s%d, 14
s_add_u32 s64, s64, s65
s_lshl_b32 s64, s64, 10
s_add_u32 s64, s64, %d''' % (sWave, WS_H))
        for th in range(2):
            for k in range(14):
                if k % 4 == 0 and (k or th): a('s_add_u32 s64, s64, %d' % (4096 if k else 112 * 1024 - 3 * 4096))
                a('buffer_load_dwordx4 %s, v4, %s, s64 offen offset:%d sc1' % (v(H + 56 * th + 4 * k, 4), srd(sWS), 1024 * (k % 4)))
        a('''v_and_b32 v5, 31, v0
v_mul_u32_u24 v5, 272, v5
v_lshrrev_b32 v6, 5, v0
v_lshl_add_u32 v5, v6, 4, v5
s_mul_i32 s64, s%d, 8704
v_add_u32 v5, s64, v5
v_add_u32 v6, %d, v5''' % (sWave, 8 * 8704))
        for th in range(2):
            for dh in range(2):
                for k in range(14):
                    if dh == 0: a('s_waitcnt vmcnt(%d)' % (27 - 14 * th - k))
                    a('v_mfma_f32_32x32x16_bf16 %s, %s, %s, %s' % (v(ACC, 16), v(WD + 8 * k + 4 * dh, 4), v(H + 56 * th + 4 * k, 4), '0' if k == 0 else v(ACC, 16)))
                for q in range(4):
                    a('ds_write_b128 v%d, %s offset:%d' % (5 + th, v(ACC + 4 * q, 4), PART + 128 * dh + 32 * q))
        self.stamp(8)
        a('s_lshl_b32 s69, s68, 5')
        self.wave0(lambda: self.poll(WS_FY, 69, 32))
        a('s_barrier')
        a('''v_lshrrev_b32 v7, 3, v0
v_and_b32 v8, 7, v0
v_lshlrev_b32 v8, 4, v8
v_lshl_or_b32 v9, v7, 12, v8
s_lshl_b32 s64, s68, 3
s_add_u32 s64, s64, s%d
s_lshl_b32 s64, s64, 15
s_lshl_b32 s65, s66, 7
s_add_u32 s64, s64, s65
s_add_u32 s64, s64, %d
buffer_load_dwordx4 v[32:35], v9, %s, s64 offen sc1
v_lshrrev_b32 v10, 4, v0
v_and_b32 v11, 15, v0
v_lshlrev_b32 v12, 3, v11
v_lshl_or_b32 v12, v10, 10, v12
s_lshl_b32 s64, s66, 4
s_add_u32 s64, s64, s%d
s_lshl_b32 s64, s64, 12
s_lshl_b32 s65, s68, 7
s_add_u32 s70, s64, s65
s_add_u32 s71, s70, 32768
buffer_load_dwordx2 v[36:37], v12, %s, s70 offen
buffer_load_dwordx2 v[38:39], v12, %s, s71 offen
v_mul_u32_u24 v9, 144, v7
v_add_u32 v9, v9, v8
s_mul_i32 s64, s%d, %d
s_add_u32 s64, s64, %d
v_add_u32 v9, s64, v9
s_lshl_b32 s64, s%d, 2
v_add_u32 v10, s64, v10
v_mul_u32_u24 v13, 272, v10
v_lshl_add_u32 v13, v11, 4, v13
v_add_u32 v14, %d, v13
v_mul_u32_u24 v7, 576, v11
v_lshl_add_u32 v7, v10, 1, v7
v_add_u32 v7, %d, v7''' % (sWave, WS_YT, srd(sWS), sWave, srd(sX), srd(sX), sWave, 8 * 144, YL, sWave, 8 * 8704, YL))
        for r in range(8): a('v_mov_b32 v%d, 0' % (40 + r))
        a('s_waitcnt vmcnt(2)\nds_write_b128 v9, v[32:35]\ns_waitcnt lgkmcnt(0)\ns_barrier')
        S = 48
        for th in range(2):
            for w in range(8):
                a('ds_read_b128 %s, v%d offset:%d' % (v(S + 32 * th + 4 * w, 4), 13 + th, PART + 8704 * w))
            for e in range(4): a('ds_read_u16_d16_hi v%d, v7 offset:%d' % (40 + 4 * th + e, 144 * e + 64 * th))
        a('s_mov_b32 s64, 0xffff0000\ns_waitcnt vmcnt(0)')
        for th in range(2):
            a('s_waitcnt lgkmcnt(%d)' % (12 if th == 0 else 0))
            B = S + 32 * th
            for w in range(1, 8):
                a('v_pk_add_f32 %s, %s, %s\nv_pk_add_f32 %s, %s, %s' % (v(B, 2), v(B, 2), v(B + 4 * w, 2), v(B + 2, 2), v(B + 2, 2), v(B + 4 * w + 2, 2)))
            for k in range(2):
                a('''v_lshlrev_b32 v32, 16, v%d
v_and_b32 v33, s64, v%d
v_pk_add_f32 v[32:33], v[32:33], %s
v_pk_add_f32 %s, %s, v[32:33]
v_cvt_pk_bf16_f32 v%d, v%d, v%d''' % (36 + 2 * th + k, 36 + 2 * th + k, v(40 + 4 * th + 2 * k, 2), v(B + 2 * k, 2), v(B + 2 * k, 2), 34 + k, B + 2 * k, B + 2 * k + 1))
            a('buffer_store_dwordx2 v[34:35], v12, %s, s%d offen' % (srd(sOUT), 70 + th))
        self.stamp(9)
        if self.prof:
            a('''s_lshl_b32 s64, s2, 3
s_add_u32 s64, s64, s%d
s_lshl_b32 s64, s64, 6
s_add_u32 s64, s64, %d
s_memrealtime s[98:99]
s_waitcnt lgkmcnt(0)
v_writelane_b32 v15, s98, 15
v_lshlrev_b32 v5, 2, v0
s_mov_b64 exec, 0xffff
buffer_store_dword v15, v5, %s, s64 offen''' % (sWave, WS_PROF, srd(sWS)))
        a('L_exit:\ns_endpgm')

    def build(self):
        self.prologue(); self.gemm1(); self.role_s(); self.common(); self.gemm2()
        body = self.a.finish()
        ref = open('cdna_kernels/%s.s.ref' % NAME).read()
        head = [l for l in ref.split('\n') if l.startswith(';') and '@launch' not in l]
        s = '\n'.join(head) + '\n; @launch grid=(256,1,1) block=(512,1,1) lds=%d\n' % LDS_SIZE
        s += '''.amdgcn_target "amdgcn-amd-amdhsa--gfx950"
.text
.globl %s_kernel
.p2align 8
.type %s_kernel,@function
%s_kernel:
''' % (NAME, NAME, NAME) + body
        s += '''.section .rodata,"a"
.p2align 6
.amdhsa_kernel %s_kernel
  .amdhsa_next_free_vgpr 256
  .amdhsa_next_free_sgpr 102
  .amdhsa_accum_offset 256
  .amdhsa_group_segment_fixed_size 0
  .amdhsa_kernarg_size 128
  .amdhsa_user_sgpr_count 2
  .amdhsa_user_sgpr_kernarg_segment_ptr 1
  .amdhsa_system_sgpr_workgroup_id_x 1
.end_amdhsa_kernel
''' % NAME
        return s

if __name__ == '__main__':
    out = sys.argv[1]
    g = Gen(prof='prof' in sys.argv[2:], dump='K' if 'dumpK' in sys.argv[2:] else None)
    open(out, 'w').write(g.build())
```

```python
import re

TRANS = ('v_exp_f32', 'v_log_f32', 'v_rcp_f32', 'v_rsq_f32', 'v_sqrt_f32', 'v_sin_f32', 'v_cos_f32', 'v_rcp_iflag_f32')

def regs(tok):
    tok = tok.strip()
    tok = re.sub(r'^-', '', tok)
    m = re.match(r'^(?:abs|neg)\((.*)\)$', tok)
    if m: tok = m.group(1)
    tok = tok.strip('|')
    m = re.match(r'^([vsa])(\d+)$', tok)
    if m: return {(m.group(1), int(m.group(2)))}
    m = re.match(r'^([vsa])\[(\d+):(\d+)\]$', tok)
    if m: return {(m.group(1), i) for i in range(int(m.group(2)), int(m.group(3)) + 1)}
    if tok in ('vcc', 'vcc_lo', 'vcc_hi'): return {('x', 'vcc')}
    if tok in ('exec', 'exec_lo', 'exec_hi'): return {('x', 'exec')}
    if tok == 'm0': return {('x', 'm0')}
    return set()

class Ins:
    def __init__(self, text):
        self.text = text
        t = text.split(';')[0].strip()
        self.label = None
        if t.endswith(':'):
            self.label = t[:-1]; self.mn = None; self.kind = 'label'; self.defs = set(); self.uses = set(); return
        if t.startswith('.'):
            self.mn = t; self.kind = 'dir'; self.defs = set(); self.uses = set(); return
        parts = t.split(None, 1)
        mn = parts[0]; self.mn = mn
        rest = parts[1] if len(parts) > 1 else ''
        ops = [o.strip() for o in re.split(r',(?![^\[]*\])', rest)] if rest else []
        mods = ''
        if ops:
            last = ops[-1].split(None, 1)
            ops[-1] = last[0]
            mods = last[1] if len(last) > 1 else ''
        self.ops = ops; self.mods = mods
        R = [regs(o) for o in ops]
        U = lambda l: set().union(*l) if l else set()
        self.defs = set(); self.uses = set(); self.stdata = set()
        self.dpp = ('row_' in mods or 'quad_perm' in mods or mn.endswith('_dpp'))
        base = re.sub(r'_(e32|e64|dpp|sdwa)$', '', mn)
        if mn.startswith('v_mfma'):
            self.kind = 'mfma'; self.passes = 8 if ('32x32' in mn or 'x4_f32' in mn) else 4
            self.defs = R[0]; self.A = R[1]; self.B = R[2]; self.C = R[3]; self.uses = R[1] | R[2] | R[3]
        elif mn.startswith('v_'):
            self.kind = 'valu'; self.trans = base in TRANS
            if base.startswith('v_cmp'):
                self.defs = R[0]; self.uses = U(R[1:])
                if base.startswith('v_cmpx'): self.defs = self.defs | {('x', 'exec')}
            elif 'swap' in base:
                self.defs = R[0] | R[1]; self.uses = R[0] | R[1]
            elif base in ('v_add_co_u32', 'v_sub_co_u32', 'v_addc_co_u32', 'v_subb_co_u32', 'v_div_scale_f32', 'v_subrev_co_u32'):
                self.defs = R[0] | R[1]; self.uses = U(R[2:])
            else:
                self.defs = R[0]; self.uses = U(R[1:])
                if base in ('v_fmac_f32', 'v_dot2c_f32_bf16', 'v_writelane_b32') or self.dpp or 'UNUSED_PRESERVE' in mods: self.uses |= R[0]
                if base == 'v_div_fmas_f32': self.uses |= {('x', 'vcc')}
                if base == 'v_cndmask_b32' and len(ops) == 3: self.uses |= {('x', 'vcc')}
            self.lane_read = base in ('v_readlane_b32', 'v_readfirstlane_b32')
            self.permlane = base.startswith('v_permlane')
        elif mn.startswith('ds_'):
            self.kind = 'ds'
            if mn.startswith('ds_read') or mn.startswith('ds_bpermute') or mn.startswith('ds_permute') or mn.startswith('ds_swizzle'):
                self.defs = R[0]; self.uses = U(R[1:])
                if 'd16' in mn: self.uses |= R[0]
            else:
                self.uses = U(R)
            if 'addtid' in mn: self.uses |= {('x', 'm0')}
        elif mn.startswith('buffer_') or mn.startswith('global_'):
            self.kind = 'vmem'
            lds = bool(re.search(r'\blds\b', mods))
            self.lds = lds
            if '_load' in mn:
                if lds: self.uses = U(R) | {('x', 'm0')}
                else:
                    self.defs = R[0]; self.uses = U(R[1:])
                    if 'd16' in mn: self.uses |= R[0]
            elif '_store' in mn or '_atomic' in mn:
                self.uses = U(R)
                data = R[0] if mn.startswith('buffer_') else R[1]
                if 'x3' in mn or 'x4' in mn: self.stdata = data
            else:
                self.uses = U(R)
        elif mn.startswith('s_'):
            self.kind = 'salu'
            if mn.startswith('s_cmp') or mn.startswith('s_bitcmp') or mn.startswith('s_cbranch') or mn in ('s_branch', 's_waitcnt', 's_nop', 's_barrier', 's_endpgm', 's_sleep', 's_setprio'):
                self.uses = U(R)
            else:
                self.defs = R[0] if R else set(); self.uses = U(R[1:])
                if 'saveexec' in mn: self.defs = self.defs | {('x', 'exec')}
        else:
            raise ValueError('unknown instr: ' + text)

    def states(self):
        if self.kind in ('label', 'dir'): return 0
        if self.mn == 's_nop': return int(self.ops[0], 0) + 1
        return 1

def vs(s): return {r for r in s if r[0] in 'va'}
def ss(s): return {r for r in s if r[0] == 's' or r == ('x', 'vcc')}

def need(p, c):
    n = 0
    if p.kind == 'mfma':
        big = p.passes == 8
        D = p.defs
        if c.kind == 'mfma':
            if D & (c.A | c.B): n = max(n, 12 if big else 8)
            if D & c.C and not (D == c.C and p.passes == c.passes): n = max(n, 10 if big else 6)
            if D & c.defs and not (D & c.C): n = max(n, 12 if big else 8)
        elif c.kind in ('valu', 'ds', 'vmem'):
            if D & (c.uses | c.defs): n = max(n, 12 if big else 8)
            if c.kind == 'valu' and p.C & c.defs: n = max(n, 7 if big else 3)
    if p.kind == 'valu':
        dv = vs(p.defs); dsg = ss(p.defs)
        if c.kind == 'mfma' and dv & c.uses: n = max(n, 2)
        if c.kind == 'mfma' and ('x', 'exec') in p.defs: n = max(n, 4)
        if c.kind == 'valu':
            if p.trans and not c.trans and dv & (c.uses): n = max(n, 1)
            if c.lane_read and dv & c.uses: n = max(n, 1)
            if c.permlane and dv & c.uses: n = max(n, 2)
            if c.dpp and dv & c.uses: n = max(n, 2)
            if dsg & c.uses: n = max(n, 4 if c.mn.startswith(('v_readlane', 'v_writelane')) else 2)
            if ('sdwa' in p.mn or 'op_sel' in p.mods) and dv & (c.uses | c.defs): n = max(n, 1)
            if ('x', 'exec') in p.defs: n = max(n, 5)
        if c.kind == 'vmem' and dsg & c.uses: n = max(n, 5)
        if c.kind == 'salu' and dsg & c.uses and not c.mn.startswith('s_cbranch'): n = max(n, 1)
    if p.kind == 'salu' and ('x', 'm0') in p.defs and ('x', 'm0') in c.uses and c.kind in ('vmem', 'ds'): n = max(n, 1)
    if p.kind == 'vmem' and p.stdata and c.kind in ('valu', 'mfma', 'ds', 'vmem') and p.stdata & c.defs: n = max(n, 2)
    return n

WIN = 24

PIPE = True

def fix_linear(ins):
    out = []
    for c in ins:
        if c.kind not in ('label', 'dir'):
            dist = 0; req = 0; pipe = None
            for p in reversed(out):
                if p.kind == 'dir': continue
                if p.kind == 'label':
                    pipe = None if pipe is None else -1000
                    continue
                if p.mn in ('s_branch', 's_endpgm'): break
                d = dist
                if p.kind == 'mfma' and PIPE:
                    if pipe is None: pipe = dist
                    else:
                        pipe += p.passes
                        d = max(d, pipe - 1)
                req = max(req, need(p, c) - d)
                dist += p.states()
                if dist > WIN: break
            while req > 0:
                k = min(req, 16)
                out.append(Ins('s_nop %d' % (k - 1))); req -= k
        out.append(c)
    return out

def check_edges(ins):
    pos = {c.label: i for i, c in enumerate(ins) if c.kind == 'label'}
    bad = []
    for i, b in enumerate(ins):
        if b.kind == 'salu' and (b.mn == 's_branch' or b.mn.startswith('s_cbranch')):
            tgt = pos[b.ops[0]]
            pre = []; d = 0
            for p in reversed(ins[:i + 1]):
                if p.kind in ('label', 'dir'): continue
                pre.append(p); d += p.states()
                if d > WIN: break
            d2 = 0
            for c in ins[tgt:]:
                if c.kind in ('label', 'dir'): continue
                dist = d2
                for p in pre:
                    if need(p, c) > dist: bad.append((b.text, p.text, c.text, need(p, c), dist))
                    dist += p.states()
                d2 += c.states()
                if d2 > WIN or c.mn in ('s_branch', 's_endpgm'): break
    return bad

class Asm:
    def __init__(self): self.raw = []
    def __call__(self, s):
        for l in s.split('\n'):
            l = l.strip()
            if l and not l.startswith(';'): self.raw.append(l)
    def finish(self):
        ins = fix_linear([Ins(l) for l in self.raw])
        bad = check_edges(ins)
        for b in bad: print('EDGE HAZARD', b)
        assert not bad
        return '\n'.join((c.text if c.kind == 'label' else '    ' + c.text) for c in ins) + '\n'
```

```python
import re
from asmlib import Ins, fix_linear, check_edges, regs

VM_MAX, LG_MAX = 63, 15

class State:
    def __init__(self):
        self.vm = {}; self.lg = {}; self.smem = False
    def copy(self):
        s = State(); s.vm = dict(self.vm); s.lg = dict(self.lg); s.smem = self.smem; return s
    def merge(self, o):
        ch = False
        for a, b in ((self.vm, o.vm), (self.lg, o.lg)):
            for k, v in b.items():
                if k not in a or v < a[k]: a[k] = v; ch = True
        if o.smem and not self.smem: self.smem = True; ch = True
        return ch
    def wait(self, vm=None, lg=None):
        if vm is not None: self.vm = {k: v for k, v in self.vm.items() if v < vm}
        if lg is not None:
            if lg == 0: self.lg = {}; self.smem = False
            elif not self.smem: self.lg = {k: v for k, v in self.lg.items() if v < lg}
    def issue(self, q, keys):
        d = getattr(self, q)
        for k in d: d[k] += 1
        for k in keys: d[k] = 0
        d[('any', q)] = 0

def is_smem(c): return c.kind == 'salu' and (c.mn.startswith('s_load') or c.mn.startswith('s_memtime') or c.mn.startswith('s_memrealtime') or c.mn.startswith('s_buffer_load'))

def wait_text(vm, lg):
    t = []
    if vm is not None: t.append('vmcnt(%d)' % min(vm, VM_MAX))
    if lg is not None: t.append('lgkmcnt(%d)' % min(lg, LG_MAX))
    return 's_waitcnt ' + ' '.join(t)

def one_pass(raw, label_in):
    out = []; st = State(); changed = False; lastq = None
    def need(keys):
        vm = min([st.vm[k] for k in keys if k in st.vm], default=None)
        lg = min([st.lg[k] for k in keys if k in st.lg], default=None)
        if lg is not None and st.smem: lg = 0
        if vm is None and lg is None: return
        if vm is not None: vm = min(vm, VM_MAX)
        if lg is not None: lg = min(lg, LG_MAX)
        if out and out[-1].mn == 's_waitcnt' and getattr(out[-1], 'auto', False):
            pv, pl = out[-1].auto_v
            vm2 = vm if pv is None else (pv if vm is None else min(pv, vm))
            lg2 = lg if pl is None else (pl if lg is None else min(pl, lg))
            out.pop(); vm, lg = vm2, lg2
        w = Ins(wait_text(vm, lg)); w.auto = True; w.auto_v = (vm, lg); out.append(w)
        st.wait(vm, lg)
    for l in raw:
        if l.startswith('@'):
            p = l.split()
            if st is None: continue
            if p[0] == '@tok':
                getattr(st, lastq)[('tok', p[1])] = 0
            elif p[0] == '@wait':
                keys = []
                for n in p[1:]:
                    keys.append(('any', n) if n in ('vm', 'lg') else ('tok', n))
                need(keys)
            elif p[0] == '@forget':
                for n in p[1:]:
                    st.vm.pop(('tok', n), None); st.lg.pop(('tok', n), None)
            else: raise ValueError(l)
            continue
        c = Ins(l)
        if c.kind == 'label':
            if st is None: st = label_in.get(c.label, State()).copy()
            else:
                if c.label in label_in: st.merge(label_in[c.label])
            out.append(c); continue
        if c.kind == 'dir': out.append(c); continue
        if st is None: st = State()
        if c.mn == 's_waitcnt':
            m = re.search(r'vmcnt\((\d+)\)', l); n = re.search(r'lgkmcnt\((\d+)\)', l)
            st.wait(int(m.group(1)) if m else None, int(n.group(1)) if n else None)
            out.append(c); continue
        need(list(c.uses | c.defs))
        out.append(c)
        if c.kind == 'vmem': st.issue('vm', c.defs); lastq = 'vm'
        elif c.kind == 'ds': st.issue('lg', c.defs); lastq = 'lg'
        elif is_smem(c): st.issue('lg', c.defs); st.smem = True; lastq = 'lg'
        if c.kind == 'salu' and (c.mn == 's_branch' or c.mn.startswith('s_cbranch')):
            t = c.ops[0]
            if t not in label_in: label_in[t] = st.copy(); changed = True
            elif label_in[t].merge(st): changed = True
            if c.mn == 's_branch': st = None
        if c.mn == 's_endpgm': st = None
    return out, changed

class Asm:
    def __init__(self): self.raw = []
    def __call__(self, s):
        if isinstance(s, (list, tuple)):
            for x in s: self(x)
            return
        for l in s.split('\n'):
            l = l.strip()
            if l and not l.startswith(';'): self.raw.append(l)
    def finish(self):
        label_in = {}
        for it in range(20):
            out, ch = one_pass(self.raw, label_in)
            if not ch: break
        else: raise RuntimeError('waitcnt dataflow did not converge')
        ins = fix_linear(out)
        bad = check_edges(ins)
        for b in bad: print('EDGE HAZARD', b)
        assert not bad
        return '\n'.join((c.text if c.kind == 'label' else '    ' + c.text) for c in ins) + '\n'

def lines(s):
    if isinstance(s, (list, tuple)):
        r = []
        for x in s: r += lines(x)
        return r
    return [l.strip() for l in s.split('\n') if l.strip()]

class Weaver:
    def __init__(self): self.q = []
    def add(self, *groups):
        for g in groups: self.q.append(lines(g))
    def each(self, s):
        glue = False
        for l in lines(s):
            if (l.startswith('@tok') or glue) and self.q: self.q[-1].append(l)
            else: self.q.append([l])
            glue = l.startswith('s_cmp') or l.startswith('@wait')
    def take(self, n):
        r = []
        while self.q and n > 0:
            g = self.q.pop(0); r += g
            n -= max(1, len([x for x in g if not x.startswith('@')]))
        return r
    def rest(self):
        r = []
        while self.q: r += self.q.pop(0)
        return r
```

```python
import sys
from asmlib2 import Asm, Weaver, lines

NAME = 'parallel_sum__ssm_conv_s4__glu_gated_reglu__prompt'
WS_FA, WS_FB, WS_FH, WS_FY = 0x1000, 0x2000, 0x10000, 0x50000
WS_STATS, WS_CS = 0xA0000, 0xA8000
WS_PROF = 0xB0000
WS_XNT, WS_YT, WS_H = 0x100000, 0x300000, 0x500000
WS_DUMP = 0xC00000
WS_SIZE = 0x1400000
LDS_SIZE = 163840
WR, XR = 0, 65536
XS = [0, 1, 0, 1, 0, 1, 2, 0]
TAB = 98304
KR, KRS = 114688, 4608
UC, UCS = 123904, 4160
RED = XR
PART = [16384 + 34816 * q for q in range(4)]
YL, YLS = 0, 132
ST, CSP = 0, 65536
L2E, L2E_LO, LN2, INV2PI = 0x3fb8aa3b, 0x32a57060, 0x3f317218, 0x3e22f983
SPIN = 400000
HBLK = 56 * 1024

sX, sW, sWD, sOUT, sWS, sDBG = 36, 40, 44, 48, 52, 56
sWave, sXcd, sSlot, sNonce = 60, 61, 62, 63
sI, sJ, sKW, sKX, sMW, sTT, sDT, sNh = 70, 71, 72, 73, 74, 75, 76, 77
sZ, sWDo, sFH, sH0, sH1, sDD, sCh, sMask = 78, 82, 83, 84, 85, 86, 87, 88
sU, sCS, sST, sSel, sRh, sOut = 89, 90, 91, 92, 93, 94
vWA, vXA, vDW, vDX = 1, 3, 7, 9
vWD, vTR, vTA, vNon, vFlg, vDsk = 11, 16, 17, 21, 22, 23
vCS, vM, vPoll, vH, vL16, vUW = 24, 26, 28, 29, 30, 31
vL4 = 10
ACC, F, AP, BP, WD = 32, (96, 112), 128, 136, 144
TA, T0, RA, FA, FB, KD, PR, TMP = 128, 144, 166, 176, 208, 240, 244, 251
def srd(b): return f's[{b}:{b + 3}]'
def v(a, n=1): return f'v{a}' if n == 1 else f'v[{a}:{a + n - 1}]'
def mfma32(d, a, b, c): return f"v_mfma_f32_32x32x16_bf16 {v(d, 16)}, {v(a, 4)}, {v(b, 4)}, {c if c == '0' else v(c, 16)}"
def mfma16(d, a, b, c): return f"v_mfma_f32_16x16x32_bf16 {v(d, 4)}, {v(a, 4)}, {v(b, 4)}, {c if c == '0' else v(c, 4)}"
def single(s): return [[l] for l in lines(s)]

class Gen:
    def __init__(self, opt=()):
        self.opt = {}
        for o in opt:
            k, _, val = o.partition('='); self.opt[k] = int(val) if val else 1
        self.prof = 'prof' in self.opt
        self.a = Asm(); self.uid = 0; self.tail = []
        self.early = self.P('early', 0)
        self.zone = [0, 1, 2, 0, 1, 2, 3] if not self.early else [3, 3, 0, 1, 2, 0, 1]
        self.npre = 3 + self.early
    def P(self, k, d): return self.opt.get(k, d)
    def L(self, name):
        self.uid += 1; return f'L_{name}_{self.uid}'
    def stamp_s(self, idx, force=False):
        if not self.prof or ('gst' in self.opt and 4 <= idx <= 9 and not force): return ''
        return f's_memtime s[98:99]\ns_waitcnt lgkmcnt(0)\nv_writelane_b32 v15, s98, {idx}'
    def stamp(self, idx): self.a(self.stamp_s(idx))

    def poll_issue(self, addr, nonce):
        r = []
        if nonce: r += [f'v_mov_b32 v{vNon}, 0', f'buffer_load_dword v{vNon}, v{vNon}, {srd(sDBG)}, 0 offen sc1']
        return r + [f'buffer_load_dword v{vFlg}, v{addr}, {srd(sWS)}, 0 offen sc1']
    def poll_check(self, addr, nonce):
        rd = [f'v_readfirstlane_b32 s{sNonce}, v{vNon}', f's_cmp_eq_u32 s{sNonce}, 0']
        cmp = f'v_cmp_ne_u32 vcc, s{sNonce}, v{vFlg}'
        if 'nopoll' in self.opt: return rd + [cmp]
        slow, back, loop = self.L('slow'), self.L('back'), self.L('spin')
        r = rd + ['s_cbranch_scc1 ' + slow] if nonce else []
        r += [cmp, 's_cbranch_vccnz ' + slow, back + ':']
        t = [slow + ':', 's_mov_b32 s69, 0', loop + ':'] + self.poll_issue(addr, nonce)
        t += ['s_add_u32 s69, s69, 1', 's_waitcnt vmcnt(0)', f's_cmp_gt_u32 s69, {SPIN}', 's_cbranch_scc1 ' + back]
        if nonce: t += rd + ['s_cbranch_scc1 ' + loop]
        t += [cmp, 's_cbranch_vccnz ' + loop, 's_branch ' + back]
        self.tail += t
        return r
    def flag(self, soff): return f'buffer_store_dword v{vNon}, v{vL4}, {srd(sWS)}, s{soff} offen sc1'
    def param_loads(self):
        r = [f'global_load_ushort v{PR + 6}, v{TMP + 1}, s[18:19]']
        r += [f'global_load_ushort v{PR + k}, v{TMP}, s[{6 + 2 * k}:{7 + 2 * k}]' for k in range(6)]
        return r + [f'global_load_ushort v{vDsk}, v{TMP + 1}, s[20:21]']
    def srds(self, lst): return [f's_mov_b32 s{b}, s{p}\ns_mov_b32 s{b + 1}, s{p + 1}' for b, p in lst]

    def prologue(self):
        a = self.a
        if self.prof: a('s_memtime s[96:97]')
        a(f'''s_cmp_ge_u32 s2, 256
s_cbranch_scc1 L_exit
s_load_dwordx16 s[4:19], s[0:1], 0
s_load_dwordx16 s[20:35], s[0:1], 64
v_lshrrev_b32 v1, 6, v0
v_and_b32 v0, 63, v0
v_readfirstlane_b32 s{sWave}, v1
s_and_b32 s{sXcd}, s2, 7
s_lshr_b32 s{sSlot}, s2, 3''')
        if self.prof: a('v_mov_b32 v15, 0')
        for b, size in ((sX, 2097152), (sW, 1835008), (sWD, 1835008), (sOUT, 2097152), (sWS, WS_SIZE), (sDBG, 256)):
            a(f's_mov_b32 s{b + 2}, {size}\ns_mov_b32 s{b + 3}, 0x20000')
        a(f'''s_and_b32 s{sDD}, s{sWave}, 1
s_lshl_b32 s65, s2, 1
s_add_u32 s{sCh}, s{sDD}, s65
s_bfe_u32 s{sNh}, s{sWave}, 0x10001
s_lshr_b32 s{sRh}, s{sWave}, 2
s_lshl_b32 s66, s{sCh}, 8
s_lshl_b32 s65, s{sNh}, 7
s_add_u32 s66, s66, s65
v_lshl_add_u32 v{TMP}, v0, 1, s66
s_lshl_b32 s64, s{sCh}, 1
v_mov_b32 v{TMP + 1}, s64
s_lshr_b32 s64, s{sSlot}, 3
s_lshl_b32 s{sTT}, s{sXcd}, 2
s_add_u32 s{sTT}, s{sTT}, s64
s_and_b32 s64, s{sXcd}, 1
s_lshl_b32 s64, s64, 2
s_add_u32 s64, s64, s{sSlot}
s_and_b32 s{sDT}, s64, 7
s_mov_b32 s{sMask}, 0xffff0000
v_lshlrev_b32 v{vL16}, 4, v0
s_cmp_lt_u32 s{sSlot}, 4
s_cbranch_scc1 L_role_s''')

    def dma_x(self, D):
        return [[f's_add_u32 m0, s{sMW}, {XR + 16384 * XS[D]}'],
                [f'buffer_load_dwordx4 v{vDX}, {srd(sX)}, s{sKX} offen lds'],
                [f'buffer_load_dwordx4 v{vDX + 1}, {srd(sX)}, s{sKX} offen offset:1024 lds', f'@tok x{D}', f's_add_u32 s{sKX}, s{sKX}, 128']]
    def dma_w(self, H):
        return [[f's_add_u32 m0, s{sMW}, {WR + 16384 * (H % 4)}'],
                [f'buffer_load_dwordx4 v{vDW}, {srd(sW)}, s{sKW} offen lds'],
                [f'buffer_load_dwordx4 v{vDW + 1}, {srd(sW)}, s{sKW} offen offset:1024 lds', f'@tok w{H}', f's_add_u32 s{sKW}, s{sKW}, {32 * 3584}']]

    def g_start(self):
        a = self.a
        a(f'''s_sub_u32 s64, s{sSlot}, 4
s_and_b32 s65, s64, 3
s_lshr_b32 s{sI}, s{sXcd}, 1
s_lshl_b32 s{sI}, s{sI}, 2
s_add_u32 s{sI}, s{sI}, s65
s_lshr_b32 s64, s64, 2
s_and_b32 s65, s{sXcd}, 1
s_mul_i32 s65, s65, 7
s_add_u32 s{sJ}, s64, s65
v_lshrrev_b32 v11, 3, v0
v_lshrrev_b32 v12, 4, v0
v_and_b32 v13, 7, v0
v_xor_b32 v13, v13, v12
v_lshlrev_b32 v13, 4, v13
v_lshl_add_u32 v{vDX}, v11, 10, v13
v_xor_b32 v{vDX + 1}, 64, v{vDX}
v_add_u32 v{vDX + 1}, 7168, v{vDX + 1}
s_lshl_b32 s{sKX}, s{sI}, 17
s_lshl_b32 s64, s{sWave}, 14
s_add_u32 s{sKX}, s{sKX}, s64
s_lshl_b32 s{sMW}, s{sWave}, 11
v_lshl_add_u32 v13, v12, 1, s{sRh}
v_bfe_u32 v14, v0, 1, 3
v_xor_b32 v13, v13, v14
v_lshlrev_b32 v13, 5, v13
v_and_b32 v14, 1, v0
v_lshl_or_b32 v13, v14, 4, v13
v_mul_u32_u24 v{vDW}, 3584, v12
v_add_u32 v{vDW}, v{vDW}, v13
v_add_u32 v{vDW + 1}, {4 * 3584 - 1024}, v{vDW}
s_and_b32 s64, s{sWave}, 3
s_mul_i32 s{sKW}, s64, {8 * 3584}
s_lshl_b32 s65, s{sJ}, 8
s_add_u32 s{sKW}, s{sKW}, s65
s_cmp_ge_u32 s{sWave}, 4
s_cselect_b32 s{sW}, s26, s24
s_cselect_b32 s{sW + 1}, s27, s25''')
        a(self.srds([(sX, 4)]))
        self.stamp(0)
        if self.prof: a('v_writelane_b32 v15, s96, 10')
        a(self.dma_x(0)); a(self.dma_w(0))
        a(self.param_loads())
        a(self.srds([(sWD, 28), (sOUT, 30), (sWS, 34), (sDBG, 32)]))
        a(f'''v_bfe_u32 v11, v0, 2, 2
v_bfe_u32 v12, v0, 4, 1
v_lshrrev_b32 v13, 5, v0
v_lshl_add_u32 v14, v13, 3, v11
v_lshlrev_b32 v14, 8, v14
v_lshl_or_b32 v14, v12, 13, v14
v_and_b32 v24, 3, v0
v_lshl_or_b32 v14, v24, 3, v14
v_lshl_add_u32 v11, v11, 1, v12
s_and_b32 s65, s{sWave}, 6
v_xor_b32 v11, s65, v11
v_lshl_or_b32 v{vWA}, v11, 5, v14
v_xor_b32 v{vWA + 1}, 32, v{vWA}
v_and_b32 v11, 31, v0
v_bfe_u32 v12, v0, 1, 3
v_xor_b32 v12, v12, v13
v_lshlrev_b32 v12, 4, v12
v_lshl_or_b32 v{vXA}, v11, 7, v12
s_lshl_b32 s64, s{sDD}, 13
s_add_u32 s64, s64, {XR}
v_add_u32 v{vXA}, s64, v{vXA}
v_xor_b32 v{vXA + 1}, 32, v{vXA}
v_xor_b32 v{vXA + 2}, 64, v{vXA}
v_xor_b32 v{vXA + 3}, 0x60, v{vXA}''')
        a(self.dma_w(1)); a(self.dma_x(1))
        a(self.kg_addr())
        a(self.dma_w(2))
        a(self.wd_setup())
        a(self.dma_w(3))
        self.stamp(11)

    def g_addr(self):
        return f'''s_lshl_b32 s64, s{sI}, 1
s_add_u32 s64, s64, s{sDD}
s_lshl_b32 s{sST}, s64, 9
s_add_u32 s{sST}, s{sST}, {WS_STATS}
v_writelane_b32 v{vPoll}, s64, 9
s_mul_i32 s64, s64, 56
s_lshl_b32 s65, s{sJ}, 2
s_lshr_b32 s66, s{sWave}, 1
s_add_u32 s66, s66, s65
s_add_u32 s65, s66, s64
s_lshl_b32 s{sFH}, s65, 7
s_add_u32 s{sFH}, s{sFH}, {WS_FH}
s_mul_i32 s64, s64, 3
s_add_u32 s65, s65, s64
s_lshl_b32 s65, s65, 10
s_add_u32 s{sH0}, s65, {WS_H}
s_add_u32 s{sH1}, s{sH0}, {2 * HBLK}
s_lshr_b32 s65, s66, 1
s_add_u32 s64, s65, {(WS_FB - WS_FA) // 128}
v_writelane_b32 v{vPoll}, s64, 10
s_lshl_b32 s65, s65, 9
s_and_b32 s66, s66, 1
s_lshl_b32 s66, s66, 7
s_add_u32 s65, s65, s66
s_add_u32 s{sCS}, s65, {WS_CS}
v_bfe_u32 v24, v0, 4, 1
v_mul_u32_u24 v{vH}, {HBLK}, v24
v_and_b32 v25, 15, v0
v_lshl_add_u32 v{vH}, v25, 4, v{vH}
v_lshrrev_b32 v26, 5, v0
v_lshl_add_u32 v{vH}, v26, 8, v{vH}
v_lshlrev_b32 v25, 2, v25
v_lshl_or_b32 v{vCS + 1}, v24, 8, v25
v_and_b32 v{vM + 1}, 31, v0
v_lshlrev_b32 v{vM + 1}, 3, v{vM + 1}
s_mov_b32 s{sSel}, 0x07060302'''

    def kg_addr(self):
        r = lines(f'''s_lshl_b32 s64, s{sDD}, 1
s_add_u32 s64, s64, s{sRh}
s_lshl_b32 s64, s64, 1
s_add_u32 s64, s64, s{sNh}
s_lshl_b32 s64, s64, 13
s_add_u32 s64, s64, {TAB}
v_lshl_add_u32 v{TA}, v0, 2, s64''')
        r += [f'v_xor_b32 v{TA + k}, {16 * k}, v{TA}' for k in range(1, 16)]
        r += lines(f'''v_and_b32 v174, 15, v0
v_lshrrev_b32 v175, 4, v0
v_xor_b32 v175, v174, v175
v_lshlrev_b32 v175, 4, v175
v_lshl_or_b32 v175, v174, 8, v175
s_lshl_b32 s64, s{sDD}, 15
s_add_u32 s64, s64, {TAB}
s_lshl_b32 s65, s{sRh}, 12
s_add_u32 s65, s65, s64
v_add_u32 v{RA}, s65, v175
s_lshl_b32 s65, s{sNh}, 12
s_add_u32 s65, s65, s64
s_add_u32 s65, s65, 16384
v_add_u32 v{RA + 4}, s65, v175''')
        for m in range(1, 4): r += [f'v_xor_b32 v{RA + m}, {64 * m}, v{RA}', f'v_xor_b32 v{RA + 4 + m}, {64 * m}, v{RA + 4}']
        return r
    def kg_tab(self, kind):
        r = []
        zr, zi, dt = PR, PR + 1, TMP
        def cexp(o, mult, t):
            r.extend(lines(f'''v_mul_f32 v{t}, {mult}, v{zr}
v_mul_f32 v{t + 1}, {mult}, v{zi}
v_exp_f32 v{t}, v{t}
v_fract_f32 v{t + 1}, v{t + 1}
v_cos_f32 v{o}, v{t + 1}
v_sin_f32 v{o + 1}, v{t + 1}
v_mul_f32 v{o}, v{t}, v{o}
v_mul_f32 v{o + 1}, v{t}, v{o + 1}'''))
        def cmul(o, x, y):
            assert o != x and o != y
            r.extend(lines(f'''v_mul_f32 v{o}, v{x}, v{y}
v_mul_f32 v{o + 1}, v{x}, v{y + 1}
v_fma_f32 v{o}, -v{x + 1}, v{y + 1}, v{o}
v_fmac_f32 v{o + 1}, v{x + 1}, v{y}'''))
        st = [0]
        def put(x, rows):
            t = T0 + 20 + st[0]; st[0] ^= 1
            r.append(f'v_cvt_pk_bf16_f32 v{t}, v{x}, v{x + 1}')
            for q in rows: r.append(f'ds_write_b32 v{TA + (q & 15)}, v{t} offset:{256 * q}')
        for k in ((6, 0, 1, 2, 3, 4, 5) if kind == 'U' else (6, 0, 1)): r.append(f'v_lshlrev_b32 v{PR + k}, 16, v{PR + k}')
        r.extend(lines(f'''v_lshlrev_b32 v{vDsk}, 16, v{vDsk}
s_mov_b32 s64, 0x{L2E:x}
v_mul_f32 v{dt}, s64, v{PR + 6}
v_fma_f32 v{dt + 1}, v{PR + 6}, s64, -v{dt}
v_fmamk_f32 v{dt + 1}, v{PR + 6}, 0x{L2E_LO:x}, v{dt + 1}
v_exp_f32 v{dt}, v{dt}
v_mul_f32 v{dt + 1}, 0x{LN2:x}, v{dt + 1}
v_fma_f32 v{dt}, v{dt}, v{dt + 1}, v{dt}
v_cvt_pk_bf16_f32 v{dt}, v{dt}, v{dt}
v_and_b32 v{dt}, s{sMask}, v{dt}
v_mul_f32 v{zr}, v{dt}, v{zr}
v_mul_f32 v{zi}, v{dt}, v{zi}
v_mul_f32 v{zr}, s64, v{zr}
v_mul_f32 v{zi}, 0x{INV2PI | (0x80000000 if kind == 'U' else 0):x}, v{zi}'''))
        W1, W2, W4, W8, W256, Bs, P, Q, T = [T0 + x for x in (0, 2, 4, 6, 8, 10, 14, 16, 18)]
        if kind == 'U':
            r.extend([f'v_mul_f32 v{PR + 2}, v{dt}, v{PR + 2}', f'v_mul_f32 v{PR + 3}, v{dt}, v{PR + 3}'])
            cexp(W1, '1.0', T); cmul(Bs, PR + 2, PR + 4); cexp(W256, '0x43800000', T)
            r.append(f'v_sub_f32 v{Bs + 1}, 0, v{Bs + 1}')
            cmul(W2, W1, W1); put(Bs, [0]); cmul(W4, W2, W2); cmul(W8, W4, W4)
            src = Bs
            for q in range(1, 8):
                dst = P if src != P else Q
                cmul(dst, src, W1); put(dst, [q]); src = dst
            cur = Bs
            for s in range(1, 8):
                nxt = Bs + 2 if cur == Bs else Bs
                cmul(nxt, cur, W256); cur = nxt
                if s == 1:
                    put(cur, [8, 9]); cmul(P, cur, W2); put(P, [10]); cmul(Q, cur, W4); put(Q, [11, 12, 13])
                    cmul(P, Q, W2); put(P, [14]); cmul(Q, cur, W8); put(Q, [15])
                elif s < 4:
                    b = 16 + 4 * (s - 2)
                    put(cur, [b]); cmul(P, cur, W4); put(P, [b + 1]); cmul(Q, cur, W8); put(Q, [b + 2, b + 3])
                else:
                    b = 24 + 2 * (s - 4)
                    put(cur, [b]); cmul(P, cur, W8); put(P, [b + 1])
        else:
            cexp(W8, '0x41000000', T); cexp(W2, '0x43000000', T)
            r.extend([f'v_mov_b32 v{P}, 1.0', f'v_mov_b32 v{P + 1}, 0'])
            x, y, x2, y2 = P, Q, W2, W4
            for q in range(16):
                r.extend([f'v_cvt_pk_bf16_f32 v{T0 + 20}, v{x}, v{x + 1}', f'v_cvt_pk_bf16_f32 v{T0 + 21}, v{x2}, v{x2 + 1}',
                          f'ds_write2st64_b32 v{TA + q}, v{T0 + 20}, v{T0 + 21} offset0:{q} offset1:{q + 16}'])
                if q < 15: cmul(y, x, W8); cmul(y2, x2, W8)
                x, y, x2, y2 = y, x, y2, x2
        return r
    def kg_frag(self):
        return [[f'ds_read_b128 {v(FA + 4 * m, 4)}, v{RA + (m & 3)} offset:{8192 * (m >> 2)}',
                 f'ds_read_b128 {v(FB + 4 * m, 4)}, v{RA + 4 + (m & 3)} offset:{8192 * (m >> 2)}'] for m in range(8)]
    def kg_mfma(self): return [mfma16(KD, FA + 4 * m, FB + 4 * m, '0' if m == 0 else KD) for m in range(8)]
    def kg_sel(self, kind):
        PM = T0
        r = f'''v_and_b32 v174, 15, v0
v_lshrrev_b32 v175, 4, v0
v_lshl_add_u32 v174, s{sNh}, 4, v174
s_mul_i32 s64, s{sDD}, {KRS}
s_add_u32 s66, s64, {KR + 4096}
v_and_b32 v{PM + 11}, 31, v0
v_lshl_add_u32 v{PM + 11}, v{PM + 11}, 4, s66
v_mov_b32 v{PM + 16}, 0
v_mov_b32 v{PM + 17}, 0
v_mov_b32 v{PM + 18}, 0
v_mov_b32 v{PM + 19}, 0
'''
        if kind == 'U': r += f'''v_lshrrev_b32 v{PM + 12}, 1, v175
v_lshlrev_b32 v{PM + 12}, 9, v{PM + 12}
v_lshl_add_u32 v{PM + 12}, v174, 4, v{PM + 12}
v_and_b32 v175, 1, v175
v_lshl_add_u32 v{PM + 12}, v175, 3, v{PM + 12}
s_add_u32 s65, s64, {KR + 2 * 2044}
v_sub_u32 v{PM + 12}, s65, v{PM + 12}'''
        else: r += f'''v_cmp_gt_u32 vcc, 32, v0
v_add_u32 v{PM + 12}, 2, v175
v_lshlrev_b32 v175, 1, v175
v_cndmask_b32 v{PM + 12}, v175, v{PM + 12}, vcc
v_lshlrev_b32 v{PM + 12}, 9, v{PM + 12}
v_lshl_add_u32 v{PM + 12}, v174, 4, v{PM + 12}
s_add_u32 s65, s64, {KR + 2 * 2040 - 512}
v_sub_u32 v{PM + 12}, s65, v{PM + 12}
v_mov_b32 v{PM}, 0x3020302
v_mov_b32 v{PM + 1}, 0x5040504
v_mov_b32 v{PM + 2}, 0x1000302
v_mov_b32 v{PM + 3}, 0x1000100
v_cndmask_b32 v{PM + 4}, v{PM}, v{PM + 1}, vcc
v_cndmask_b32 v{PM + 5}, v{PM + 3}, v{PM + 2}, vcc
v_and_b32 v175, 33, v0
v_cmp_eq_u32 vcc, 32, v175
v_cndmask_b32 v{PM + 6}, v{PM}, v{PM + 2}, vcc'''
        return lines(r)
    def kg_exp(self, kind):
        PM, E = T0, FA
        g = [[f'ds_write_b128 v{PM + 11}, {v(PM + 16, 4)}']]
        if kind == 'U':
            return g + single(f'''v_cvt_pk_bf16_f32 v{E}, v{KD + 3}, v{KD + 2}
v_cvt_pk_bf16_f32 v{E + 1}, v{KD + 1}, v{KD}
ds_write_b64 v{PM + 12}, {v(E, 2)}''')
        g += single(f'v_cvt_pk_bf16_f32 v{PM + 8}, v{KD}, v{KD + 1}\nv_cvt_pk_bf16_f32 v{PM + 9}, v{KD + 2}, v{KD + 3}')
        for k, (hi, lo, sel) in enumerate(((9, 8, 4), (9, 8, 6), (9, 8, 5), (9, 8, 3), (9, 9, 0), (9, 9, 6), (9, 9, 3), (9, 9, 3))):
            g.append([f'v_perm_b32 v{E + k}, v{PM + hi}, v{PM + lo}, v{PM + sel}'])
        g.append([f'ds_write_b128 v{PM + 12}, {v(E, 4)} offset:512'])
        g.append(['s_mov_b32 exec_lo, 0', f'ds_write_b128 v{PM + 12}, {v(E + 4, 4)}', 's_mov_b64 exec, -1'])
        return g

    def wd_setup(self):
        return f'''v_lshrrev_b32 v24, 3, v0
v_bfe_u32 v25, v0, 4, 2
v_lshlrev_b32 v25, 1, v25
v_and_b32 v26, 7, v0
v_xor_b32 v25, v25, v26
v_lshlrev_b32 v25, 4, v25
v_lshl_or_b32 v{vWD}, v24, 10, v25
v_add_u32 v{vWD + 1}, 7168, v{vWD}
v_add_u32 v{vWD + 2}, 7168, v{vWD + 1}
v_add_u32 v{vWD + 3}, 7168, v{vWD + 2}
s_mul_i32 s{sWDo}, s{sWave}, {224 * 1024}
s_lshl_b32 s64, s{sDT}, 7
s_add_u32 s{sWDo}, s{sWDo}, s64
s_and_b32 s64, s{sWave}, 3
s_lshl_b32 s64, s64, 12
s_cmp_lt_u32 s{sWave}, 4
s_cselect_b32 s{sZ}, {XR + 16384}, {WR}
s_add_u32 s{sZ}, s{sZ}, s64
s_mov_b32 s{sZ + 1}, {XR + 32768}
s_cmp_lt_u32 s{sWave}, 4
s_cmov_b32 s{sZ + 1}, {WR + 16384}
s_add_u32 s{sZ + 1}, s{sZ + 1}, s64
s_lshl_b32 s64, s{sWave}, 12
s_add_u32 s{sZ + 2}, s64, {WR + 32768}
s_add_u32 s{sZ + 3}, s64, {UC}
v_bfe_u32 v24, v0, 2, 2
v_bfe_u32 v25, v0, 4, 1
v_lshl_add_u32 v24, v25, 2, v24
v_lshrrev_b32 v26, 1, v24
v_lshrrev_b32 v25, 5, v0
v_lshl_add_u32 v24, v25, 4, v24
v_lshlrev_b32 v24, 7, v24
v_lshl_or_b32 v24, v26, 5, v24
v_and_b32 v25, 3, v0
v_lshl_or_b32 v{vTR}, v25, 3, v24'''
    def wd_dma(self, s, after=None):
        g = [[f's_mov_b32 m0, s{sZ + self.zone[s]}']]
        for e in range(4):
            g.append([f'buffer_load_dwordx4 v{vWD + e}, {srd(sWD)}, s{sWDo} offen offset:{1024 * e} lds'])
        if after is not None: g[1] = [f'@wait r{after}'] + g[1]
        g[-1] += [f'@tok s{s}', f's_add_u32 s{sWDo}, s{sWDo}, 32768']
        return g
    def wd_read(self, s):
        g = [[f'v_add_u32 v{vTA}, s{sZ + self.zone[s]}, v{vTR}', f'v_xor_b32 v{vTA + 1}, 32, v{vTA}'],
             [f'v_xor_b32 v{vTA + 2}, 64, v{vTA}', f'v_xor_b32 v{vTA + 3}, 0x60, v{vTA}']]
        for k in range(4):
            R = WD + 16 * s + 4 * k
            g.append(([f'@wait s{s}'] if k == 0 else []) +
                     [f'ds_read_b64_tr_b16 {v(R, 2)}, v{vTA + k}', f'ds_read_b64_tr_b16 {v(R + 2, 2)}, v{vTA + k} offset:1024'])
        g[-1].append(f'@tok r{s}')
        return g
    def u_addr(self):
        return f'''s_lshr_b32 s65, s{sWave}, 1
s_lshl_b32 s64, s65, 3
v_add_u32 v{vPoll}, s64, v0
v_min_u32 v{vPoll}, 31, v{vPoll}
v_mov_b32 v{vUW}, s{sTT}
v_cmp_gt_u32 vcc, 9, v0
v_cndmask_b32 v{vPoll}, v{vUW}, v{vPoll}, vcc
s_lshl_b32 s64, s{sCh}, 12
s_lshl_b32 s65, s65, 10
s_add_u32 s64, s64, s65
s_add_u32 s{sU}, s64, {WS_XNT}
s_mul_i32 s64, s{sDD}, {4 * UCS}
s_add_u32 s64, s64, s65
s_add_u32 s64, s64, {UC + 32}
v_add_u32 v{vUW}, s64, v{vL16}'''
    def poll_fin(self): return f'v_lshlrev_b32 v{vPoll}, 7, v{vPoll}\nv_add_u32 v{vPoll}, {WS_FA}, v{vPoll}'
    UR = 232
    def u_loads(self):
        U = self.UR
        return [f'buffer_load_dwordx4 {v(U, 4)}, v{vL16}, {srd(sWS)}, s{sU} offen sc1',
                f'buffer_load_dwordx2 {v(U + 4, 2)}, v{vL16}, {srd(sWS)}, s{sU} offen offset:16 sc1']
    def u_copies(self):
        U = self.UR
        g = [[f'ds_write_b128 v{vUW}, {v(U, 4)}']]
        for k in range(4): g.append([f'v_alignbit_b32 v{U + 8 + k}, v{U + 1 + k}, v{U + k}, 16'])
        g.append([f'ds_write_b128 v{vUW}, {v(U + 8, 4)} offset:{UCS}'])
        for k in range(4): g.append([f'v_mov_b32 v{U + 12 + k}, v{U + 1 + k}'])
        g.append([f'ds_write_b128 v{vUW}, {v(U + 12, 4)} offset:{2 * UCS}'])
        for k in range(4): g.append([f'v_alignbit_b32 v{U + 16 + k}, v{U + 2 + k}, v{U + 1 + k}, 16'])
        g.append([f'ds_write_b128 v{vUW}, {v(U + 16, 4)} offset:{3 * UCS}'])
        g += single(f'''v_readfirstlane_b32 s64, v{U}
v_readfirstlane_b32 s65, v{U + 1}
v_mov_b32 v{U + 20}, 0
v_mov_b32 v{U + 21}, 0
v_mov_b32 v{U + 22}, 0
v_mov_b32 v{U + 23}, 0
v_lshrrev_b32 v{U + 6}, 1, v0
v_mul_u32_u24 v{U + 6}, {UCS}, v{U + 6}
v_and_b32 v{U + 7}, 1, v0
v_lshl_add_u32 v{U + 6}, v{U + 7}, 4, v{U + 6}
s_mul_i32 s66, s{sDD}, {4 * UCS}
s_add_u32 s66, s66, {UC}
v_add_u32 v{U + 6}, s66, v{U + 6}
s_lshl_b32 s66, s64, 16
v_writelane_b32 v{U + 23}, s66, 3
v_writelane_b32 v{U + 23}, s64, 5
v_writelane_b32 v{U + 22}, s66, 7
s_lshl_b64 s[66:67], s[64:65], 16
v_writelane_b32 v{U + 23}, s67, 7''')
        g.append(lines(f'''s_cmp_lt_u32 s{sWave}, 2
s_cselect_b64 exec, 0xff, 0
ds_write_b128 v{U + 6}, {v(U + 20, 4)}
s_mov_b64 exec, -1'''))
        return g

    def gemm1(self):
        a = self.a
        o = self.opt
        def reads(H, s):
            if 'noread' in o: return []
            Fn = F[s]; sx = 2 * (H & 1) + s; xo = 16384 * XS[H >> 1]; wo = 16384 * (H % 4) + 4096 * s
            def A(m): return [f'ds_read_b64_tr_b16 {v(Fn + 4 * m, 2)}, v{vWA + m} offset:{wo}',
                              f'ds_read_b64_tr_b16 {v(Fn + 4 * m + 2, 2)}, v{vWA + m} offset:{wo + 1024}']
            def B(n): return [f'ds_read_b128 {v(Fn + 8 + 4 * n, 4)}, v{vXA + sx} offset:{xo + 4096 * n}']
            return A(0) + B(0) + B(1) + A(1)
        def mf(s, t, first):
            return mfma32(ACC + 16 * t, F[s] + 4 * (t >> 1), F[s] + 8 + 4 * (t & 1), '0' if first else ACC + 16 * t)
        nod = 'nodma' in o
        HP = self.P('hp', 9)
        NV, NVT = self.P('nv', 4), self.P('nvt', 5)
        KT, KM = self.P('kt', 13), self.P('km', 18)
        e0 = self.early
        xdma = {1: [2], 3: [3], 5: [4], 7: [5], 8: [6], 9: [7]}
        wdd = {12: e0, 13: e0 + 1}
        if e0: wdd[8] = 0; xdma = {1: [2], 3: [3], 5: [4], 7: [5, 6], 9: [7]}
        def step(k, W, nv, fixed=None):
            H, s = divmod(k, 2)
            rd = reads(H + s, 1 - s)
            gaps = [rd[:3], rd[3:], [], []]
            if s == 1 and not nod:
                d = []
                for D in xdma.get(H, []): d += self.dma_x(D)
                if H == HP: d += [self.poll_issue(vPoll, True)]
                if H <= 11: d += self.dma_w(H + 4)
                if H in wdd: d += self.wd_dma(wdd[H])
                n = [len([x for x in g if x.startswith('buffer')]) for g in d]
                tot = sum(n); done = 0
                if tot > 2: gaps = [rd[:2], rd[2:4], rd[4:], []]
                prev = 0
                for g, c in zip(d, n):
                    t = min(3, done * 4 // tot) if tot > 2 else 2 + done
                    if not c: t = max(prev, t - 1)
                    gaps[t] = gaps[t] + g; done += c; prev = t
            elif s == 1 and H == HP: gaps[2] += self.poll_issue(vPoll, True)
            for t in range(4):
                if 'nomfma' not in o: a(mf(s, t, k == 0))
                a(gaps[t])
                if fixed and fixed.get((k, t)): a(fixed[(k, t)])
                a(W.take(nv))
            if s == 0:
                if k in (KT - 1, 26, 30) and any(x.startswith('ds_') for g in W.q for x in g): a(W.rest())
                tok = [f'w{H + 1}'] + ([f'x{(H + 1) // 2}'] if H & 1 else [])
                a('@wait lg ' + ('' if 'novm' in o else ' '.join(tok)))
                if 'nobar' not in o: a('s_barrier')
                if 'gst' in o and H in (1, 4, 7, 10, 12, 15): a(self.stamp_s(4 + (1, 4, 7, 10, 12, 15).index(H), True))
        a('@wait x0 w0\ns_barrier')
        a(reads(0, 0))
        self.stamp(1)
        a(f's_cmp_ge_u32 s{sWave}, 4\ns_cbranch_scc1 L_gv')
        for kind in ('U', 'V'):
            if kind == 'V': a('L_gv:')
            W = Weaver()
            tab = self.kg_tab(kind)
            if 'nokg' in o: tab = []
            if 'nokgw' in o: tab = [x for x in tab if not x.startswith('ds_')]
            if 'nokgc' in o: tab = [x for x in tab if not x.startswith('v_cvt')]
            W.each(tab)
            fixed = {}
            fr, km = self.kg_frag(), self.kg_mfma()
            for m, (dk, t) in enumerate([(0, 0), (0, 1), (0, 2), (0, 2), (0, 3), (0, 3), (1, 0), (1, 1)]):
                fixed.setdefault((KT + dk, t), []).extend(fr[m])
            for m in range(8): fixed.setdefault((KT + 1 + (m + 2) // 4, (m + 2) % 4), []).append(km[m])
            if 'nokm' in o: fixed = {}
            for k in range(KM):
                if k == KT: W.each(self.kg_sel(kind)); W.each(self.u_addr()); W.each(self.g_addr()); W.each(self.poll_fin())
                if k == KM - 1: W.add(*self.kg_exp(kind))
                step(k, W, NVT if k < KT else NV, fixed)
            a(W.rest())
            if kind == 'U': a('s_branch L_gm')
        a('L_gm:')
        side = {k: Weaver() for k in range(32)}
        k0 = 2 * (HP + 2) + 1
        side[k0].add(self.poll_check(vPoll, True) + self.u_loads() + lines(f'''buffer_load_dword v{vCS}, v{vCS + 1}, {srd(sWS)}, s{sCS} offen sc1
buffer_load_dword v{vCS + 1}, v{vCS + 1}, {srd(sWS)}, s{sCS} offen offset:64 sc1
buffer_load_dword v{vM}, v{vM + 1}, {srd(sWS)}, s{sST} offen sc1
buffer_load_dword v{vM + 1}, v{vM + 1}, {srd(sWS)}, s{sST} offen offset:256 sc1'''))
        side[k0].each(f'v_and_b32 v{vL4}, 31, v0\nv_lshlrev_b32 v{vL4}, 2, v{vL4}')
        if e0:
            side[21].add(*(self.wd_read(0) + [[]] * 4 + self.wd_dma(1, 0)))
            side[26].add(*self.wd_read(1))
        side[28].add(*self.u_copies())
        corr = ['v_cmp_gt_u32 vcc, 32, v0']
        for n in range(2):
            B, m = BP + 4 * n, vM + n
            corr += lines(f'''v_xor_b32 v{m}, 0x80000000, v{m}
v_cndmask_b32 v{m}, 0, v{m}, vcc
v_lshrrev_b32 v{B + 1}, 16, v{m}
v_or_b32 v{B}, v{m}, v{B + 1}''')
        for m in range(2):
            A, c = AP + 4 * m, vCS + m
            corr += lines(f'''v_and_b32 v26, s{sMask}, v{c}
v_sub_f32 v26, v{c}, v26
v_and_b32 v27, s{sMask}, v26
v_sub_f32 v27, v26, v27
v_perm_b32 v{A}, v26, v{c}, s{sSel}
v_lshrrev_b32 v{A + 1}, 16, v27''')
        side[24].each([f'v_mov_b32 v{AP + 4 * m + r}, 0' for m in range(4) for r in (2, 3)])
        side[29].each(corr)
        W = Weaver()
        for k in range(KM, 31):
            W.q += side[k].q
            step(k, W, NV)
        if not nod: W.q = W.q + self.wd_dma(e0 + 2)
        def epi(t):
            A = ACC + 16 * t; O = F[0] + 4 * t
            r = [f'v_max_f32 v{A + i}, 0, v{A + i}' for i in range(8)]
            r += [f'v_mul_f32 v{A + i}, v{A + i}, v{A + 8 + i}' for i in range(8)]
            r += [f'v_cvt_pk_bf16_f32 v{O + i}, v{A + 2 * i}, v{A + 2 * i + 1}' for i in range(4)]
            r += [f'buffer_store_dwordx4 {v(O, 4)}, v{vH}, {srd(sWS)}, s{sH0 + (t & 1)} offen offset:{512 * (t >> 1)} sc1', '@tok hst']
            if self.P('hdup', 0):
                r += [f's_add_u32 s95, s{sH0 + (t & 1)}, 0x700000', f'buffer_store_dwordx4 {v(O, 4)}, v{vH}, {srd(sWS)}, s95 offen offset:{512 * (t >> 1)}' + (' sc1' if self.P('hdup', 0) == 2 else '')]
            return r
        for t in range(4):
            a(mf(1, t, False))
            a(W.rest() if t == 0 else W.take(6))
            a(mfma32(ACC + 16 * t, AP + 4 * (t >> 1), BP + 4 * (t & 1), ACC + 16 * t))
            if t >= 1: W.each(epi(t - 1))
            a(W.take(6))
        self.stamp(2)
        W.each(epi(3))
        a(W.rest())
        self.stamp(3)

    def role_s(self):
        a = self.a
        sQ, sLine = sI, sJ
        X, WB, M, U, SA, SF = 32, 64, 128, 160, 136, 152
        a(f'''L_role_s:
s_lshl_b32 s{sQ}, s{sXcd}, 2
s_add_u32 s{sQ}, s{sQ}, s{sSlot}
s_lshl_b32 s64, s{sQ}, 3
s_add_u32 s64, s64, s{sWave}
s_lshl_b32 s64, s64, 13
s_add_u32 s65, s64, 4096
s_lshr_b32 s66, s{sXcd}, 1
s_lshl_b32 s66, s66, 2
s_add_u32 s68, s66, s{sSlot}
s_min_u32 s66, s68, 13
s_and_b32 s67, s{sXcd}, 1
s_mul_i32 s67, s67, 14
s_add_u32 s{sLine}, s66, s67
v_lshrrev_b32 v2, 3, v0
v_mul_u32_u24 v2, 3584, v2
v_and_b32 v3, 7, v0
v_lshl_add_u32 v2, v3, 4, v2
s_and_b32 s66, s{sWave}, 3
s_mul_i32 s66, s66, {128 * 3584}
s_lshl_b32 s67, s{sLine}, 7
s_add_u32 s{sKW}, s66, s67
v_and_b32 v3, 31, v0
v_lshlrev_b32 v{vL4}, 2, v3
v_mov_b32 v3, 0
s_cmp_ge_u32 s{sWave}, 4
s_cselect_b32 s{sW}, s26, s24
s_cselect_b32 s{sW + 1}, s27, s25''')
        a(self.srds([(sX, 4), (sWS, 34)]))
        self.stamp(0)
        if self.prof: a('v_writelane_b32 v15, s96, 10')
        a(f'buffer_load_dword v14, v3, {srd(sWS)}, 0 offen sc1')
        for r in range(8):
            a(f'buffer_load_dwordx4 {v(X + 4 * r, 4)}, v{vL16}, {srd(sX)}, s{64 + r // 4} offen offset:{1024 * (r % 4)}')
        a(self.srds([(sWD, 28), (sOUT, 30), (sDBG, 32)]))
        a('v_bfe_u32 v4, v0, 2, 2\nv_mov_b32 v5, 0x3f803f80')
        for g in range(4):
            a(f'v_cmp_eq_u32 vcc, {g}, v4\nv_cndmask_b32 v{SA + 4 * g}, 0, v5, vcc\nv_cndmask_b32 v{SF + g}, 0, 1.0, vcc')
            for r in range(1, 4): a(f'v_mov_b32 v{SA + 4 * g + r}, v{SA + 4 * g}')
        a('s_barrier')
        l = self.L('mknonce')
        a(f'''s_or_b32 s64, s2, s{sWave}
s_cmp_lg_u32 s64, 0
s_cbranch_scc1 {l}
v_add_u32 v14, 1, v14
v_max_u32 v14, 1, v14
s_mov_b64 exec, 1
buffer_store_dword v14, v3, {srd(sDBG)}, 0 offen sc1
buffer_store_dword v14, v3, {srd(sWS)}, 0 offen sc1
s_mov_b64 exec, -1
{l}:''')
        a(self.param_loads())
        wl = Weaver()
        for e in range(16):
            wl.add([f'buffer_load_dwordx4 {v(WB + 4 * e, 4)}, v2, {srd(sW)}, s{sKW} offen', f's_add_u32 s{sKW}, s{sKW}, {8 * 3584}'])
        self.cnt = 0
        def b(s):
            for x in lines(s):
                a(x); self.cnt += 1
                if self.cnt % self.P('sw', 12) == 0: a(wl.take(1))
        a(wl.take(2 * self.P('sw0', 2)))
        self.stamp(11)
        for r in range(8): b(mfma16(M + 4 * (r >> 2), SA + 4 * (r & 3), X + 4 * r, '0' if r & 3 == 0 else M + 4 * (r >> 2)))
        self.stamp(1)
        for r in range(8):
            B = U + 8 * r; P = X + 4 * r
            for k in range(4): b(f'v_lshlrev_b32 v{B + 2 * k}, 16, v{P + k}\nv_and_b32 v{B + 2 * k + 1}, s{sMask}, v{P + k}')
            b(f'v_pk_mul_f32 {v(P, 2)}, {v(B, 2)}, {v(B, 2)}')
            for k in range(1, 4): b(f'v_pk_fma_f32 {v(P, 2)}, {v(B + 2 * k, 2)}, {v(B + 2 * k, 2)}, {v(P, 2)}')
            b(f'v_add_f32 v{P}, v{P}, v{P + 1}')
        for r in range(8):
            D = 224 + 4 * (r >> 2)
            b(f"v_mfma_f32_16x16x4_f32 {v(D, 4)}, v{SF + (r & 3)}, v{X + 4 * r}, {'0' if r & 3 == 0 else v(D, 4)}")
        for sh in (8, 4, 2, 1):
            for R in (M, M + 4): b(f'v_add_f32_dpp v{R}, v{R}, v{R} row_ror:{sh} row_mask:0xf bank_mask:0xf')
        for sh in (8, 4, 2, 1):
            for R in (224, 228): b(f'v_add_f32_dpp v{R}, v{R}, v{R} row_ror:{sh} row_mask:0xf bank_mask:0xf')
        b(f'''v_and_b32 v9, 8, v0
v_cmp_eq_u32 vcc, 0, v9
v_cndmask_b32 v9, v{M + 4}, v{M}, vcc
v_cndmask_b32 v12, v228, v224, vcc
v_mul_f32 v9, 0x3b000000, v9
v_cvt_pk_bf16_f32 v26, v9, v9
v_mul_f32 v9, v9, v9
v_mul_f32 v12, 0x3b000000, v12
v_sub_f32 v12, v12, v9
v_and_b32 v26, s{sMask}, v26
v_max_f32 v12, 0, v12
v_cvt_pk_bf16_f32 v12, v12, v12
v_and_b32 v12, s{sMask}, v12
v_add_f32 v12, 0x3727c5ac, v12
v_cvt_pk_bf16_f32 v12, v12, v12
v_and_b32 v12, s{sMask}, v12
v_sqrt_f32 v12, v12
v_cvt_pk_bf16_f32 v12, v12, v12
v_and_b32 v12, s{sMask}, v12
v_rcp_f32 v13, v12
v_fma_f32 v14, -v12, v13, 1.0
v_fma_f32 v13, v14, v13, v13
v_mul_f32 v27, v13, v13
v_mul_f32 v12, v26, v13
v_sub_f32 v12, 0, v12''')
        for r in range(8):
            ln = 16 * (r & 3) + 8 * (r >> 2)
            b(f'v_readlane_b32 s{4 + 2 * r}, v13, {ln}\nv_readlane_b32 s{5 + 2 * r}, v12, {ln}')
        for r in range(8):
            B = U + 8 * r; sp = f's[{4 + 2 * r}:{5 + 2 * r}]'
            for k in range(4): b(f'v_pk_fma_f32 {v(B + 2 * k, 2)}, {v(B + 2 * k, 2)}, {sp}, {sp} op_sel:[0,0,1] op_sel_hi:[1,0,1]')
        T = X
        b(f'''v_and_b32 v9, 7, v0
v_xor_b32 v9, s{sWave}, v9
v_lshlrev_b32 v9, 4, v9
v_lshl_or_b32 v9, v0, 10, v9''')
        for e in range(8):
            for p in range(4): b(f'v_cvt_pk_bf16_f32 v{T + 4 * e + p}, v{U + 16 * p + e}, v{U + 16 * p + 8 + e}')
            b(f'ds_write_b128 v9, {v(T + 4 * e, 4)} offset:{ST + 128 * e}')
        a(wl.rest())
        a(f'''buffer_load_dword v28, v3, {srd(sDBG)}, 0 offen sc1
s_lshl_b32 s64, s{sWave}, 13
v_add_u32 v9, s64, v{vL16}
v_lshrrev_b32 v12, 3, v0
v_and_b32 v13, 7, v0
v_lshlrev_b32 v13, 4, v13
v_lshl_or_b32 v12, v12, 12, v13
v_lshrrev_b32 v14, 4, v0
v_bfe_u32 v13, v0, 3, 1
v_lshl_add_u32 v14, v13, 2, v14
v_lshlrev_b32 v14, 3, v14
s_lshl_b32 s66, s{sQ}, 3
s_add_u32 s66, s66, s{sWave}
s_lshl_b32 s66, s66, 6
s_add_u32 s66, s66, {WS_STATS}
s_lshl_b32 s64, s{sWave}, 18
s_lshl_b32 s65, s{sQ}, 7
s_add_u32 s64, s64, s65
s_add_u32 s64, s64, {WS_XNT}
@wait lg
s_barrier''')
        self.stamp(2)
        for e in range(8): a(f'v_xor_b32 v13, {16 * e}, v9\nds_read_b128 {v(T + 4 * e, 4)}, v13 offset:{ST + 1024 * e}')
        a(f'''s_mov_b32 exec_lo, 0x01010101
s_mov_b32 exec_hi, 0x01010101
buffer_store_dwordx2 v[26:27], v14, {srd(sWS)}, s66 offen sc1
s_mov_b64 exec, -1''')
        for e in range(8):
            a(f'buffer_store_dwordx4 {v(T + 4 * e, 4)}, v12, {srd(sWS)}, s64 offen sc1\n@tok xst\ns_add_u32 s64, s64, 32768')
        ONES = 4
        a('v_and_b32 v9, 15, v0\nv_mov_b32 v12, 0x3f80\nv_mov_b32 v13, 0x3f800000')
        for k in range(4):
            a(f'''v_cmp_eq_u32 vcc, {2 * k}, v9
v_cndmask_b32 v{ONES + k}, 0, v12, vcc
v_cmp_eq_u32 vcc, {2 * k + 1}, v9
v_cndmask_b32 v{ONES + k}, v{ONES + k}, v13, vcc''')
        for e in range(16): a(mfma16(M, ONES, WB + 4 * e, '0' if e == 0 else M))
        a(f'''v_and_b32 v9, 7, v0
v_lshrrev_b32 v12, 4, v0
v_lshlrev_b32 v12, 4, v12
v_lshl_or_b32 v9, v9, 5, v12
s_lshl_b32 s64, s{sWave}, 8
s_add_u32 s64, s64, {CSP}
v_add_u32 v9, s64, v9''')
        for r in range(4): a(f'v_add_f32_dpp v{M + r}, v{M + r}, v{M + r} row_ror:8 row_mask:0xf bank_mask:0xf')
        a(f'''s_mov_b64 exec, 0x00ff00ff
ds_write_b128 v9, {v(M, 4)}
s_mov_b64 exec, -1
@wait lg
s_barrier''')
        self.stamp(12)
        l, l1, l2, sp = self.L('pub'), self.L('nocs'), self.L('nonce_ok'), self.L('nonce_spin')
        a(f'''s_cmp_lg_u32 s{sWave}, 0
s_cbranch_scc1 {l1}
s_cmp_ge_u32 s68, 14
s_cbranch_scc1 {l1}
v_lshlrev_b32 v9, 2, v0
v_add_u32 v12, {CSP}, v9''')
        for k in range(8): a(f'ds_read_b32 v{M + k}, v12 offset:{256 * k}')
        a(f's_lshl_b32 s64, s{sLine}, 9\ns_add_u32 s64, s64, {WS_CS}')
        for m in range(2):
            B = M + 4 * m
            a(f'''v_add_f32 v{B}, v{B}, v{B + 1}
v_add_f32 v{B + 2}, v{B + 2}, v{B + 3}
v_add_f32 v{B}, v{B}, v{B + 2}
buffer_store_dword v{B}, v9, {srd(sWS)}, s64 offen offset:{256 * m} sc1''')
        a(f'{l1}:')
        a(self.kg_addr())
        a(f'''s_waitcnt vmcnt(0)
s_barrier''')
        self.stamp(3)
        a(f'''s_cmp_lg_u32 s{sWave}, 0
s_cbranch_scc1 {l}
s_mov_b32 s69, 0
{sp}:
v_readfirstlane_b32 s64, v28
s_cmp_lg_u32 s64, 0
s_cbranch_scc1 {l2}
buffer_load_dword v28, v3, {srd(sDBG)}, 0 offen sc1
s_add_u32 s69, s69, 1
s_waitcnt vmcnt(0)
s_cmp_le_u32 s69, {SPIN}
s_cbranch_scc1 {sp}
{l2}:
s_lshl_b32 s64, s{sQ}, 7
s_add_u32 s64, s64, {WS_FA}
buffer_store_dword v28, v{vL4}, {srd(sWS)}, s64 offen sc1
s_cmp_ge_u32 s68, 14
s_cbranch_scc1 {l}
s_lshl_b32 s64, s{sLine}, 7
s_add_u32 s64, s64, {WS_FB}
buffer_store_dword v28, v{vL4}, {srd(sWS)}, s64 offen sc1
{l}:''')
        a(self.wd_setup())
        a(f's_cmp_ge_u32 s{sWave}, 4\ns_cbranch_scc1 L_sv')
        for kind in ('U', 'V'):
            if kind == 'V': a('L_sv:')
            a(self.kg_tab(kind))
            a('@wait lg\ns_barrier')
            a(self.kg_frag()); a(self.kg_sel(kind)); a(self.kg_mfma())
            a('s_barrier')
            a(self.kg_exp(kind))
            if kind == 'U': a('s_branch L_sm')
        a('L_sm:')
        for s in range(self.early):
            a(self.wd_dma(s, s - 1 if s else None)); a(self.wd_read(s))
        if self.early: a('@wait lg\ns_barrier')
        for s in range(self.early, self.npre): a(self.wd_dma(s))
        a(self.u_addr()); a(self.poll_fin())
        a(self.poll_issue(vPoll, True)); a(self.poll_check(vPoll, True))
        a(self.u_loads()); a(self.u_copies())
        a(f'''s_lshl_b32 s{sFH}, s{sWave}, 7
s_add_u32 s{sFH}, s{sFH}, {WS_FH + 1792 * 128}
s_waitcnt vmcnt(0) lgkmcnt(0)
s_barrier
s_branch L_post''')

    def conv(self):
        a = self.a
        Y = 56
        a(f'''L_post:
v_and_b32 v8, 15, v0
v_lshrrev_b32 v9, 4, v0
v_add_u32 v3, 1, v8
v_and_b32 v4, 3, v3
v_sub_u32 v3, v3, v4
v_lshl_add_u32 v3, v9, 3, v3
v_mul_u32_u24 v4, {UCS}, v4
v_lshl_add_u32 v1, v3, 1, v4
s_lshl_b32 s64, s{sRh}, 8
s_mul_i32 s65, s{sDD}, {4 * UCS}
s_add_u32 s65, s65, s64
s_add_u32 s65, s65, {UC}
v_add_u32 v1, s65, v1
v_lshlrev_b32 v3, 5, v8
v_lshlrev_b32 v4, 4, v9
v_sub_u32 v4, v4, v3
s_mul_i32 s65, s{sDD}, {KRS}
s_add_u32 s65, s65, s64
s_add_u32 s65, s65, {KR + 2 * (2032 - 1792)}
v_add_u32 v2, s65, v4
s_cmp_eq_u32 s{sNh}, 1
s_cbranch_scc1 L_conv1''')
        adr = f'''s_lshl_b32 s64, s{sWave}, 11
s_add_u32 s64, s64, {RED}
v_add_u32 v5, s64, v{vL16}
v_xor_b32 v6, 8192, v5
s_mul_i32 s64, s{sTT}, 56
s_mul_i32 s65, s{sWave}, 7
s_add_u32 s64, s64, s65
v_min_u32 v7, 6, v0
v_add_u32 v7, s64, v7
v_lshlrev_b32 v7, 7, v7
v_add_u32 v7, {WS_FH}, v7
s_lshl_b32 s64, s{sRh}, 2
s_add_u32 s65, s64, s{sNh}
s_sub_u32 s68, 3, s{sNh}
s_add_u32 s68, s68, s64
v_lshl_or_b32 v3, v9, 3, v3
s_mul_i32 s64, s{sDD}, {4 * UCS}
s_add_u32 s64, s64, {UC + 32}
v_add_u32 v24, s64, v3
s_lshl_b32 s65, s65, 9
s_lshl_b32 s68, s68, 9
v_add_u32 v25, s68, v24
v_add_u32 v24, s65, v24
v_sub_u32 v3, v3, v{vL16}
v_add_u32 v3, v3, v6
v_lshlrev_b32 v26, 2, v{vL4}
v_mov_b32 v27, s65
v_mov_b32 v4, s68
v_cmp_gt_u32 vcc, 32, v0
v_cndmask_b32 v27, v4, v27, vcc
v_add_u32 v26, v26, v27
s_lshl_b32 s64, s{sCh}, 12
s_add_u32 s{sH1}, s64, {WS_YT}
s_lshl_b32 s64, s{sTT}, 2
s_mul_i32 s64, s64, 56
s_mul_i32 s65, s{sWave}, 7
s_add_u32 s64, s64, s65
s_lshl_b32 s64, s64, 10
s_add_u32 s{sKW}, s64, {WS_H}
s_add_u32 s{sKX}, s{sKW}, 4096'''
        FHP = self.P('fhp', 54)
        self.nc = self.P('nc', 1)
        for var, alphas in ((0, (0, 3, 4, 7)), (1, (1, 2, 5, 6))):
            a(f'L_conv{var}:')
            seq = []
            for it in range(4):
                o = []
                for idx, al in enumerate(alphas):
                    for be in range(al + 1): o.append((max(be, al - be), idx, be, al - be))
                o.sort(reverse=(it > 0))
                seq += [(it, idx, be, ga) for _, idx, be, ga in o]
            last = {}; order = []
            for i, (it, idx, be, ga) in enumerate(seq):
                for key in ((it, 'A', ga), (it, 'B', be)):
                    if key not in last: order.append(key)
                    last[key] = i
            free = [112 + 4 * k for k in range(8)] + [96 + 4 * k for k in range(4)] + [72 + 4 * k for k in range(6)] + [32 + 4 * k for k in range(6)]
            slot = {}
            def load():
                key = order.pop(0); r = free.pop(0); slot[key] = r
                it, kind, q = key
                if kind == 'A':
                    return [f'ds_read_b64 {v(r, 2)}, v1 offset:{512 * q + 64 * it}', f'ds_read_b64 {v(r + 2, 2)}, v1 offset:{512 * q + 64 * it + 8}']
                return [f'ds_read_b128 {v(r, 4)}, v2 offset:{512 * (7 - q) + 64 * it}']
            for _ in range(self.P('cpre', 8)): a(load())
            side = {}
            def at(i, groups): side.setdefault(i, []).extend(groups)
            w = Weaver(); w.each(adr); at(0, w.q)
            for s in range(self.early, self.npre): at(20, self.wd_read(s))
            at(FHP, [['@wait hst', self.flag(sFH)]])
            for s in range(self.npre, self.npre + self.nc): at(FHP, self.wd_dma(s, s - 3))
            if 'cst' in self.opt:
                side[FHP] = [lines(self.stamp_s(13))] + side[FHP][:1] + [lines(self.stamp_s(14))] + side[FHP][1:]
            W = Weaver(); first = set()
            for i, (it, idx, be, ga) in enumerate(seq):
                while (it, 'A', ga) not in slot or (it, 'B', be) not in slot: a(load())
                a(mfma16(Y + 4 * idx, slot[(it, 'A', ga)], slot[(it, 'B', be)], Y + 4 * idx if idx in first else '0'))
                first.add(idx)
                for key in ((it, 'A', ga), (it, 'B', be)):
                    if last[key] == i: free.append(slot[key])
                if i == FHP: W.q = side[i] + W.q
                else: W.add(*side.get(i, []))
                if order and free: a(load())
                a(W.take(2))
            a(W.rest())
            if var == 0: a('s_branch L_convdone')
        a('L_convdone:')
        self.stamp(4)
        l = self.L('swap')
        a(f'''ds_read_b64 v[40:41], v24
ds_read_b64 v[42:43], v25
s_cmp_eq_u32 s{sRh}, 0
s_nop 4
s_cbranch_scc1 {l}''')
        for r in range(8): a(f'v_swap_b32 v{Y + r}, v{Y + 8 + r}')
        a(f'''{l}:
ds_write_b128 v5, {v(Y + 8, 4)}
ds_write_b128 v5, {v(Y + 12, 4)} offset:1024''')
        if self.P('pollpos', 0) == 0: a(self.poll_issue(7, False))
        for t in range(2):
            for k in range(2):
                a(f'''v_lshlrev_b32 v44, 16, v{40 + 2 * t + k}
v_and_b32 v45, s{sMask}, v{40 + 2 * t + k}
v_fmac_f32 v{Y + 4 * t + 2 * k}, v44, v{vDsk}
v_fmac_f32 v{Y + 4 * t + 2 * k + 1}, v45, v{vDsk}''')
        a('''@wait lg
s_barrier
ds_read_b128 v[32:35], v6
ds_read_b128 v[36:39], v6 offset:1024''')
        for t in range(2):
            for r in range(4): a(f'v_add_f32 v{Y + 4 * t + r}, v{Y + 4 * t + r}, v{32 + 4 * t + r}')
        for t in range(2):
            for k in range(2): a(f'v_cvt_pk_bf16_f32 v{46 + 2 * t + k}, v{Y + 4 * t + 2 * k}, v{Y + 4 * t + 2 * k + 1}')
            a(f'ds_write_b64 v3, {v(46 + 2 * t, 2)} offset:{512 * t}')
        a('ds_read_b128 v[32:35], v6')
        self.stamp(5)

    def gemm2(self):
        a = self.a
        HB, AC, RT, SUM, YD = 88, (72, 56), 40, 32, 16
        DIST, YPOS, NF, H0 = self.P('dist', 10), self.P('ypos', -1), self.P('nf', 8), self.P('h0', 4)
        sHL = (sKW, sKX)
        def hload(n):
            q, s = divmod(n, 7)
            r = [f'buffer_load_dwordx4 {v(HB + 4 * (n % 14), 4)}, v{vL16}, {srd(sWS)}, s{sHL[s // 4]} offen offset:{1024 * (s % 4)} sc1']
            if s == 6: r += [f's_add_u32 s{sKW}, s{sKW}, {HBLK}', f's_add_u32 s{sKX}, s{sKX}, {HBLK}']
            return r
        ystore = [f'buffer_store_dwordx4 v[32:35], v26, {srd(sWS)}, s{sH1} offen sc1', '@tok yst']
        late = list(range(self.npre + self.nc, 7))
        if YPOS < 0: a(ystore)
        if self.P('pollpos', 0) == 1: a(self.poll_issue(7, False))
        for s in late: a(self.wd_dma(s, s - 3 if self.zone[s] != 3 else None))
        a(f'''v_lshrrev_b32 v3, 5, v0
v_lshl_or_b32 v5, v3, 10, v{vL4}
s_lshl_b32 s64, s{sTT}, 5
s_add_u32 s64, s64, s{sWave}
s_lshl_b32 s65, s64, 4
s_lshl_b32 s64, s64, 11
s_lshl_b32 s68, s{sDT}, 7
s_add_u32 s{sOut}, s64, s68
v_lshlrev_b32 v4, 3, v3
s_add_u32 s65, s65, {WS_STATS + 4}
s_mov_b32 s64, s{sOut}''')
        xr = []
        for q in range(4):
            xr += [[f'buffer_load_dword v{24 + q}, v4, {srd(sWS)}, s65 offen offset:{128 * q} sc1'],
                   [f'buffer_load_dword v{28 + q if q != 2 else 23}, v5, {srd(sX)}, s64 offen', 's_add_u32 s64, s64, 16384']]
        XRG = [28, 29, 23, 31]
        a(self.poll_check(7, False))
        self.stamp(6)
        for n in range(H0):
            if n == YPOS: a(ystore)
            a(hload(n))
        a(f'''v_and_b32 v8, 15, v0
v_mul_u32_u24 v1, 272, v8
v_lshrrev_b32 v8, 4, v0
v_lshl_add_u32 v1, v8, 4, v1
s_mul_i32 s66, s{sWave}, 4352
s_add_u32 s66, s66, {PART[0]}
v_add_u32 v1, s66, v1
v_lshl_add_u32 v9, s{sWave}, 1, v3
v_mul_u32_u24 v2, 272, v9
v_lshl_add_u32 v2, v{vL4}, 1, v2
v_add_u32 v2, {PART[0]}, v2
v_mul_u32_u24 v3, {YLS}, v9
v_add_u32 v3, v3, v{vL4}
s_add_u32 s66, s{sXcd}, 1
s_bfe_u32 s66, s66, 0x10001
s_lshl_b32 s66, s66, 1
s_and_b32 s67, s{sXcd}, 4
s_add_u32 s66, s66, s67
s_lshl_b32 s67, s{sDT}, 3
s_add_u32 s67, s67, s{sWave}
s_lshl_b32 s68, s67, 5
s_add_u32 s66, s66, s68
v_bfe_u32 v7, v0, 1, 2
v_and_b32 v8, 1, v0
v_lshl_add_u32 v7, v7, 3, v8
v_add_u32 v7, s66, v7
v_lshlrev_b32 v7, 7, v7
v_add_u32 v7, {WS_FY}, v7
v_lshrrev_b32 v9, 3, v0
v_and_b32 v6, 7, v0
v_lshlrev_b32 v8, 4, v6
v_lshl_or_b32 v8, v9, 12, v8
s_lshl_b32 s67, s67, 15
s_lshl_b32 s68, s{sTT}, 7
s_add_u32 s67, s67, s68
s_add_u32 s{sU}, s67, {WS_YT}
v_mul_u32_u24 v6, {8 * YLS}, v6
v_lshl_add_u32 v9, v9, 1, v6
s_lshl_b32 s66, s{sWave}, 4
v_add_u32 v9, s66, v9
s_lshl_b32 s66, s2, 3
s_add_u32 s66, s66, s{sWave}
s_lshl_b32 s66, s66, 7
s_add_u32 s{sFH}, s66, {WS_FY}''')
        for n in range(H0, DIST):
            if n == YPOS: a(ystore)
            a(hload(n))
        if YPOS < 0 and self.P('yf', 0) == 0: a(['@wait yst', self.flag(sFH)])
        for s in range(self.npre, 7): a(self.wd_read(s))
        self.stamp(7)
        def pwrite(q):
            g = [[f'v_add_u32 v1, {PART[1] - PART[0]}, v1']] if q else []
            return g + [[f'ds_write_b128 v1, {v(AC[q & 1] + 4 * k, 4)} offset:{64 * k}'] for k in range(4)]
        def pread(q):
            g = [[f'v_add_u32 v2, {PART[1] - PART[0]}, v2']] if q else []
            return g + [[f'ds_read_b64 {v(RT + 2 * w, 2)}, v2 offset:{4352 * w}'] for w in range(8)]
        def psum(q):
            r = []
            for st in (8, 4, 2):
                for i in range(st): r.append(f'v_add_f32 v{RT + i}, v{RT + i}, v{RT + st + i}')
            return r + lines(f'''v_lshlrev_b32 v{SUM + 2 * q}, 16, v{XRG[q]}
v_and_b32 v{SUM + 2 * q + 1}, s{sMask}, v{XRG[q]}
v_fmac_f32 v{SUM + 2 * q}, v{RT}, v{24 + q}
v_fmac_f32 v{SUM + 2 * q + 1}, v{RT + 1}, v{24 + q}''')
        yscat = []
        for i in range(4):
            yscat += [[f'ds_write_b16 v9, v{YD + i} offset:{YL + YLS * 2 * i}'], [f'ds_write_b16_d16_hi v9, v{YD + i} offset:{YL + YLS * (2 * i + 1)}']]
        W = Weaver(); V = Weaver()
        for n in range(28):
            q, s = divmod(n, 7)
            if s == 0 and q > 0:
                if q == 1: W.add(['@wait lg', 's_barrier'])
                W.add(*pwrite(q - 1)); W.add(*[[]] * self.P('bdel', 6)); W.add(['@wait lg', 's_barrier']); W.add(*pread(q - 1)); W.each(psum(q - 1))
            if n < 2: V.add(*xr[4 * n:4 * n + 4])
            if n + DIST < 28: V.add(hload(n + DIST))
            if (YPOS >= 0 and n == YPOS) or (YPOS < 0 and self.P('yf', 0) and n == self.P('yf', 0) - 1): V.add(['@wait yst', self.flag(sFH)])
            if n == NF: V.add(self.poll_issue(7, False))
            if n == NF + DIST:
                V.add(self.poll_check(7, False) + [f'buffer_load_dwordx4 {v(YD, 4)}, v8, {srd(sWS)}, s{sU} offen sc1'])
            if n == NF + 2 * DIST: W.add(*yscat); yscat = []
            for k in range(4):
                a(mfma16(AC[q & 1] + 4 * k, WD + 16 * s + 4 * k, HB + 4 * (n % 14), '0' if s == 0 else AC[q & 1] + 4 * k))
                if k == 3: a(V.rest())
                elif n > 0 or k > 0: a(W.take(2))
        a(W.rest())
        self.stamp(8)
        a(pwrite(3)); a(yscat)
        a('@wait lg\ns_barrier')
        for q in range(4): a(f'ds_read_b32 v{YD + q}, v3 offset:{YL + 16 * YLS * q}')
        a(pread(3))
        def fin(q):
            return f'''v_lshlrev_b32 v20, 16, v{YD + q}
v_and_b32 v21, s{sMask}, v{YD + q}
v_add_f32 v20, v20, v{SUM + 2 * q}
v_add_f32 v21, v21, v{SUM + 2 * q + 1}
v_cvt_pk_bf16_f32 v{YD + q}, v20, v21
buffer_store_dword v{YD + q}, v5, {srd(sOUT)}, s{sOut} offen
s_add_u32 s{sOut}, s{sOut}, 16384'''
        for q in range(3): a(fin(q))
        a(psum(3)); a(fin(3))
        self.stamp(9)
        if self.prof:
            a(f'''s_lshl_b32 s64, s2, 3
s_add_u32 s64, s64, s{sWave}
s_lshl_b32 s64, s64, 6
s_add_u32 s64, s64, {WS_PROF}
s_memrealtime s[98:99]
s_waitcnt lgkmcnt(0)
v_writelane_b32 v15, s98, 15
v_lshlrev_b32 v5, 2, v0
s_mov_b64 exec, 0xffff
buffer_store_dword v15, v5, {srd(sWS)}, s64 offen''')
        a('L_exit:\ns_endpgm')

    def build(self):
        self.prologue(); self.g_start(); self.gemm1(); self.conv(); self.gemm2()
        self.role_s()
        self.a(self.tail)
        body = self.a.finish()
        ref = open(f'cdna_kernels/{NAME}.s.ref').read()
        head = [l for l in ref.split('\n') if l.startswith(';') and '@launch' not in l]
        s = '\n'.join(head) + f'\n; @launch grid=(256,1,1) block=(512,1,1) lds={LDS_SIZE}\n'
        s += f'''.amdgcn_target "amdgcn-amd-amdhsa--gfx950"
.text
.globl {NAME}_kernel
.p2align 8
.type {NAME}_kernel,@function
{NAME}_kernel:
''' + body
        s += f'''.section .rodata,"a"
.p2align 6
.amdhsa_kernel {NAME}_kernel
  .amdhsa_next_free_vgpr 256
  .amdhsa_next_free_sgpr 102
  .amdhsa_accum_offset 256
  .amdhsa_group_segment_fixed_size 0
  .amdhsa_kernarg_size 128
  .amdhsa_user_sgpr_count 2
  .amdhsa_user_sgpr_kernarg_segment_ptr 1
  .amdhsa_system_sgpr_workgroup_id_x 1
.end_amdhsa_kernel
'''
        return s

if __name__ == '__main__':
    open(sys.argv[1], 'w').write(Gen(sys.argv[2:]).build())
```

```python
import sys
from asmlib2 import Asm, Weaver, lines

NAME = 'parallel_sum__ssm_conv_s4__glu_gated_reglu__prompt'
WS_FA, WS_FB, WS_FH, WS_FY = 0x1000, 0x2000, 0x10000, 0x50000
WS_STATS, WS_CS = 0xA0000, 0xA8000
WS_PROF = 0xB0000
WS_XNT, WS_YT, WS_H = 0x100000, 0x300000, 0x500000
WS_DUMP = 0xC00000
WS_SIZE = 0x1400000
LDS_SIZE = 163840
WR, XR = 0, 65536
XS = [0, 1, 0, 1, 0, 1, 2, 0]
TAB = 98304
KR, KRS = 114688, 4608
UC, UCS = 123904, 4160
RED = XR
PART = [16384 + 34816 * q for q in range(4)]
YL, YLS = 0, 132
ST, CSP = 0, 65536
L2E, L2E_LO, LN2, INV2PI = 0x3fb8aa3b, 0x32a57060, 0x3f317218, 0x3e22f983
SPIN = 400000
HBLK = 56 * 1024

sX, sW, sWD, sOUT, sWS, sDBG = 36, 40, 44, 48, 52, 56
sWave, sXcd, sSlot, sNonce = 60, 61, 62, 63
sI, sJ, sKW, sKX, sMW, sTT, sDT, sNh = 70, 71, 72, 73, 74, 75, 76, 77
sZ, sWDo, sFH, sH0, sH1, sDD, sCh, sMask = 78, 82, 83, 84, 85, 86, 87, 88
sU, sCS, sST, sSel, sRh, sOut = 89, 90, 91, 92, 93, 94
vWA, vXA, vDW, vDX = 1, 3, 7, 9
vWD, vTR, vTA, vNon, vFlg, vDsk = 11, 16, 17, 21, 22, 23
vCS, vM, vPoll, vH, vL16, vUW = 24, 26, 28, 29, 30, 31
vL4 = 10
ACC, F, AP, BP, WD = 32, (96, 112), 128, 136, 144
TA, T0, RA, FA, FB, KD, PR, TMP = 128, 144, 166, 176, 208, 240, 244, 251
def srd(b): return f's[{b}:{b + 3}]'
def v(a, n=1): return f'v{a}' if n == 1 else f'v[{a}:{a + n - 1}]'
def mfma32(d, a, b, c): return f"v_mfma_f32_32x32x16_bf16 {v(d, 16)}, {v(a, 4)}, {v(b, 4)}, {c if c == '0' else v(c, 16)}"
def mfma16(d, a, b, c): return f"v_mfma_f32_16x16x32_bf16 {v(d, 4)}, {v(a, 4)}, {v(b, 4)}, {c if c == '0' else v(c, 4)}"
def single(s): return [[l] for l in lines(s)]

class Gen:
    def __init__(self, opt=()):
        self.opt = {}
        for o in opt:
            k, _, val = o.partition('='); self.opt[k] = int(val) if val else 1
        self.prof = 'prof' in self.opt
        self.a = Asm(); self.uid = 0; self.tail = []
        self.early = self.P('early', 0)
        self.zone = [0, 1, 2, 0, 1, 2, 3] if not self.early else [3, 3, 0, 1, 2, 0, 1]
        self.npre = 3 + self.early
    def P(self, k, d): return self.opt.get(k, d)
    def L(self, name):
        self.uid += 1; return f'L_{name}_{self.uid}'
    def stamp_s(self, idx, force=False):
        if not self.prof or ('gst' in self.opt and 4 <= idx <= 9 and not force): return ''
        return f's_memtime s[98:99]\ns_waitcnt lgkmcnt(0)\nv_writelane_b32 v15, s98, {idx}'
    def stamp(self, idx): self.a(self.stamp_s(idx))

    def poll_issue(self, addr, nonce):
        r = []
        if nonce: r += [f'v_mov_b32 v{vNon}, 0', f'buffer_load_dword v{vNon}, v{vNon}, {srd(sDBG)}, 0 offen sc1']
        return r + [f'buffer_load_dword v{vFlg}, v{addr}, {srd(sWS)}, 0 offen sc1']
    def poll_check(self, addr, nonce):
        rd = [f'v_readfirstlane_b32 s{sNonce}, v{vNon}', f's_cmp_eq_u32 s{sNonce}, 0']
        cmp = f'v_cmp_ne_u32 vcc, s{sNonce}, v{vFlg}'
        if 'nopoll' in self.opt: return rd + [cmp]
        slow, back, loop = self.L('slow'), self.L('back'), self.L('spin')
        r = rd + ['s_cbranch_scc1 ' + slow] if nonce else []
        r += [cmp, 's_cbranch_vccnz ' + slow, back + ':']
        t = [slow + ':', 's_mov_b32 s69, 0', loop + ':'] + self.poll_issue(addr, nonce)
        t += ['s_add_u32 s69, s69, 1', 's_waitcnt vmcnt(0)', f's_cmp_gt_u32 s69, {SPIN}', 's_cbranch_scc1 ' + back]
        if nonce: t += rd + ['s_cbranch_scc1 ' + loop]
        t += [cmp, 's_cbranch_vccnz ' + loop, 's_branch ' + back]
        self.tail += t
        return r
    def flag(self, soff): return f'buffer_store_dword v{vNon}, v{vL4}, {srd(sWS)}, s{soff} offen sc1'
    def param_loads(self):
        r = [f'global_load_ushort v{PR + 6}, v{TMP + 1}, s[18:19]']
        r += [f'global_load_ushort v{PR + k}, v{TMP}, s[{6 + 2 * k}:{7 + 2 * k}]' for k in range(6)]
        return r + [f'global_load_ushort v{vDsk}, v{TMP + 1}, s[20:21]']
    def srds(self, lst): return [f's_mov_b32 s{b}, s{p}\ns_mov_b32 s{b + 1}, s{p + 1}' for b, p in lst]

    def prologue(self):
        a = self.a
        if self.prof: a('s_memtime s[96:97]')
        a(f'''s_cmp_ge_u32 s2, 256
s_cbranch_scc1 L_exit
s_load_dwordx16 s[4:19], s[0:1], 0
s_load_dwordx16 s[20:35], s[0:1], 64
v_lshrrev_b32 v1, 6, v0
v_and_b32 v0, 63, v0
v_readfirstlane_b32 s{sWave}, v1
s_and_b32 s{sXcd}, s2, 7
s_lshr_b32 s{sSlot}, s2, 3''')
        if self.prof: a('v_mov_b32 v15, 0')
        for b, size in ((sX, 2097152), (sW, 1835008), (sWD, 1835008), (sOUT, 2097152), (sWS, WS_SIZE), (sDBG, 256)):
            a(f's_mov_b32 s{b + 2}, {size}\ns_mov_b32 s{b + 3}, 0x20000')
        a(f'''s_and_b32 s{sDD}, s{sWave}, 1
s_lshl_b32 s65, s2, 1
s_add_u32 s{sCh}, s{sDD}, s65
s_bfe_u32 s{sNh}, s{sWave}, 0x10001
s_lshr_b32 s{sRh}, s{sWave}, 2
s_lshl_b32 s66, s{sCh}, 8
s_lshl_b32 s65, s{sNh}, 7
s_add_u32 s66, s66, s65
v_lshl_add_u32 v{TMP}, v0, 1, s66
s_lshl_b32 s64, s{sCh}, 1
v_mov_b32 v{TMP + 1}, s64
s_lshr_b32 s64, s{sSlot}, 3
s_lshl_b32 s{sTT}, s{sXcd}, 2
s_add_u32 s{sTT}, s{sTT}, s64
s_and_b32 s64, s{sXcd}, 1
s_lshl_b32 s64, s64, 2
s_add_u32 s64, s64, s{sSlot}
s_and_b32 s{sDT}, s64, 7
s_mov_b32 s{sMask}, 0xffff0000
v_lshlrev_b32 v{vL16}, 4, v0
s_cmp_lt_u32 s{sSlot}, 4
s_cbranch_scc1 L_role_s''')

    def dma_x(self, D):
        return [[f's_add_u32 m0, s{sMW}, {XR + 16384 * XS[D]}'],
                [f'buffer_load_dwordx4 v{vDX}, {srd(sX)}, s{sKX} offen lds'],
                [f'buffer_load_dwordx4 v{vDX + 1}, {srd(sX)}, s{sKX} offen offset:1024 lds', f'@tok x{D}', f's_add_u32 s{sKX}, s{sKX}, 128']]
    def dma_w(self, H):
        return [[f's_add_u32 m0, s{sMW}, {WR + 16384 * (H % 4)}'],
                [f'buffer_load_dwordx4 v{vDW}, {srd(sW)}, s{sKW} offen lds'],
                [f'buffer_load_dwordx4 v{vDW + 1}, {srd(sW)}, s{sKW} offen offset:1024 lds', f'@tok w{H}', f's_add_u32 s{sKW}, s{sKW}, {32 * 3584}']]

    def g_start(self):
        a = self.a
        a(f'''s_sub_u32 s64, s{sSlot}, 4
s_and_b32 s65, s64, 3
s_lshr_b32 s{sI}, s{sXcd}, 1
s_lshl_b32 s{sI}, s{sI}, 2
s_add_u32 s{sI}, s{sI}, s65
s_lshr_b32 s64, s64, 2
s_and_b32 s65, s{sXcd}, 1
s_mul_i32 s65, s65, 7
s_add_u32 s{sJ}, s64, s65
v_lshrrev_b32 v11, 3, v0
v_lshrrev_b32 v12, 4, v0
v_and_b32 v13, 7, v0
v_xor_b32 v13, v13, v12
v_lshlrev_b32 v13, 4, v13
v_lshl_add_u32 v{vDX}, v11, 10, v13
v_xor_b32 v{vDX + 1}, 64, v{vDX}
v_add_u32 v{vDX + 1}, 7168, v{vDX + 1}
s_lshl_b32 s{sKX}, s{sI}, 17
s_lshl_b32 s64, s{sWave}, 14
s_add_u32 s{sKX}, s{sKX}, s64
s_lshl_b32 s{sMW}, s{sWave}, 11
v_lshl_add_u32 v13, v12, 1, s{sRh}
v_bfe_u32 v14, v0, 1, 3
v_xor_b32 v13, v13, v14
v_lshlrev_b32 v13, 5, v13
v_and_b32 v14, 1, v0
v_lshl_or_b32 v13, v14, 4, v13
v_mul_u32_u24 v{vDW}, 3584, v12
v_add_u32 v{vDW}, v{vDW}, v13
v_add_u32 v{vDW + 1}, {4 * 3584 - 1024}, v{vDW}
s_and_b32 s64, s{sWave}, 3
s_mul_i32 s{sKW}, s64, {8 * 3584}
s_lshl_b32 s65, s{sJ}, 8
s_add_u32 s{sKW}, s{sKW}, s65
s_cmp_ge_u32 s{sWave}, 4
s_cselect_b32 s{sW}, s26, s24
s_cselect_b32 s{sW + 1}, s27, s25''')
        a(self.srds([(sX, 4)]))
        self.stamp(0)
        if self.prof: a('v_writelane_b32 v15, s96, 10')
        a(self.dma_x(0)); a(self.dma_w(0))
        a(self.param_loads())
        a(self.srds([(sWD, 28), (sOUT, 30), (sWS, 34), (sDBG, 32)]))
        a(f'''v_bfe_u32 v11, v0, 2, 2
v_bfe_u32 v12, v0, 4, 1
v_lshrrev_b32 v13, 5, v0
v_lshl_add_u32 v14, v13, 3, v11
v_lshlrev_b32 v14, 8, v14
v_lshl_or_b32 v14, v12, 13, v14
v_and_b32 v24, 3, v0
v_lshl_or_b32 v14, v24, 3, v14
v_lshl_add_u32 v11, v11, 1, v12
s_and_b32 s65, s{sWave}, 6
v_xor_b32 v11, s65, v11
v_lshl_or_b32 v{vWA}, v11, 5, v14
v_xor_b32 v{vWA + 1}, 32, v{vWA}
v_and_b32 v11, 31, v0
v_bfe_u32 v12, v0, 1, 3
v_xor_b32 v12, v12, v13
v_lshlrev_b32 v12, 4, v12
v_lshl_or_b32 v{vXA}, v11, 7, v12
s_lshl_b32 s64, s{sDD}, 13
s_add_u32 s64, s64, {XR}
v_add_u32 v{vXA}, s64, v{vXA}
v_xor_b32 v{vXA + 1}, 32, v{vXA}
v_xor_b32 v{vXA + 2}, 64, v{vXA}
v_xor_b32 v{vXA + 3}, 0x60, v{vXA}''')
        a(self.dma_w(1)); a(self.dma_x(1))
        a(self.kg_addr())
        a(self.dma_w(2))
        a(self.wd_setup())
        a(self.dma_w(3))
        self.stamp(11)

    def g_addr(self):
        return f'''s_lshl_b32 s64, s{sI}, 1
s_add_u32 s64, s64, s{sDD}
s_lshl_b32 s{sST}, s64, 9
s_add_u32 s{sST}, s{sST}, {WS_STATS}
v_writelane_b32 v{vPoll}, s64, 9
s_mul_i32 s64, s64, 56
s_lshl_b32 s65, s{sJ}, 2
s_lshr_b32 s66, s{sWave}, 1
s_add_u32 s66, s66, s65
s_add_u32 s65, s66, s64
s_lshl_b32 s{sFH}, s65, 7
s_add_u32 s{sFH}, s{sFH}, {WS_FH}
s_mul_i32 s64, s64, 3
s_add_u32 s65, s65, s64
s_lshl_b32 s65, s65, 10
s_add_u32 s{sH0}, s65, {WS_H}
s_add_u32 s{sH1}, s{sH0}, {2 * HBLK}
s_lshr_b32 s65, s66, 1
s_add_u32 s64, s65, {(WS_FB - WS_FA) // 128}
v_writelane_b32 v{vPoll}, s64, 10
s_lshl_b32 s65, s65, 9
s_and_b32 s66, s66, 1
s_lshl_b32 s66, s66, 7
s_add_u32 s65, s65, s66
s_add_u32 s{sCS}, s65, {WS_CS}
v_bfe_u32 v24, v0, 4, 1
v_mul_u32_u24 v{vH}, {HBLK}, v24
v_and_b32 v25, 15, v0
v_lshl_add_u32 v{vH}, v25, 4, v{vH}
v_lshrrev_b32 v26, 5, v0
v_lshl_add_u32 v{vH}, v26, 8, v{vH}
v_lshlrev_b32 v25, 2, v25
v_lshl_or_b32 v{vCS + 1}, v24, 8, v25
v_and_b32 v{vM + 1}, 31, v0
v_lshlrev_b32 v{vM + 1}, 3, v{vM + 1}
s_mov_b32 s{sSel}, 0x07060302'''

    def kg_addr(self):
        r = lines(f'''s_lshl_b32 s64, s{sDD}, 1
s_add_u32 s64, s64, s{sRh}
s_lshl_b32 s64, s64, 1
s_add_u32 s64, s64, s{sNh}
s_lshl_b32 s64, s64, 13
s_add_u32 s64, s64, {TAB}
v_lshl_add_u32 v{TA}, v0, 2, s64''')
        r += [f'v_xor_b32 v{TA + k}, {16 * k}, v{TA}' for k in range(1, 16)]
        r += lines(f'''v_and_b32 v174, 15, v0
v_lshrrev_b32 v175, 4, v0
v_xor_b32 v175, v174, v175
v_lshlrev_b32 v175, 4, v175
v_lshl_or_b32 v175, v174, 8, v175
s_lshl_b32 s64, s{sDD}, 15
s_add_u32 s64, s64, {TAB}
s_lshl_b32 s65, s{sRh}, 12
s_add_u32 s65, s65, s64
v_add_u32 v{RA}, s65, v175
s_lshl_b32 s65, s{sNh}, 12
s_add_u32 s65, s65, s64
s_add_u32 s65, s65, 16384
v_add_u32 v{RA + 4}, s65, v175''')
        for m in range(1, 4): r += [f'v_xor_b32 v{RA + m}, {64 * m}, v{RA}', f'v_xor_b32 v{RA + 4 + m}, {64 * m}, v{RA + 4}']
        return r
    def kg_tab(self, kind):
        r = []
        zr, zi, dt = PR, PR + 1, TMP
        def cexp(o, mult, t):
            r.extend(lines(f'''v_mul_f32 v{t}, {mult}, v{zr}
v_mul_f32 v{t + 1}, {mult}, v{zi}
v_exp_f32 v{t}, v{t}
v_fract_f32 v{t + 1}, v{t + 1}
v_cos_f32 v{o}, v{t + 1}
v_sin_f32 v{o + 1}, v{t + 1}
v_mul_f32 v{o}, v{t}, v{o}
v_mul_f32 v{o + 1}, v{t}, v{o + 1}'''))
        def cmul(o, x, y):
            assert o != x and o != y
            r.extend(lines(f'''v_mul_f32 v{o}, v{x}, v{y}
v_mul_f32 v{o + 1}, v{x}, v{y + 1}
v_fma_f32 v{o}, -v{x + 1}, v{y + 1}, v{o}
v_fmac_f32 v{o + 1}, v{x + 1}, v{y}'''))
        st = [0]
        def put(x, rows):
            t = T0 + 20 + st[0]; st[0] ^= 1
            r.append(f'v_cvt_pk_bf16_f32 v{t}, v{x}, v{x + 1}')
            for q in rows: r.append(f'ds_write_b32 v{TA + (q & 15)}, v{t} offset:{256 * q}')
        for k in ((6, 0, 1, 2, 3, 4, 5) if kind == 'U' else (6, 0, 1)): r.append(f'v_lshlrev_b32 v{PR + k}, 16, v{PR + k}')
        r.extend(lines(f'''v_lshlrev_b32 v{vDsk}, 16, v{vDsk}
s_mov_b32 s64, 0x{L2E:x}
v_mul_f32 v{dt}, s64, v{PR + 6}
v_fma_f32 v{dt + 1}, v{PR + 6}, s64, -v{dt}
v_fmamk_f32 v{dt + 1}, v{PR + 6}, 0x{L2E_LO:x}, v{dt + 1}
v_exp_f32 v{dt}, v{dt}
v_mul_f32 v{dt + 1}, 0x{LN2:x}, v{dt + 1}
v_fma_f32 v{dt}, v{dt}, v{dt + 1}, v{dt}
v_cvt_pk_bf16_f32 v{dt}, v{dt}, v{dt}
v_and_b32 v{dt}, s{sMask}, v{dt}
v_mul_f32 v{zr}, v{dt}, v{zr}
v_mul_f32 v{zi}, v{dt}, v{zi}
v_mul_f32 v{zr}, s64, v{zr}
v_mul_f32 v{zi}, 0x{INV2PI | (0x80000000 if kind == 'U' else 0):x}, v{zi}'''))
        W1, W2, W4, W8, W256, Bs, P, Q, T = [T0 + x for x in (0, 2, 4, 6, 8, 10, 14, 16, 18)]
        if kind == 'U':
            r.extend([f'v_mul_f32 v{PR + 2}, v{dt}, v{PR + 2}', f'v_mul_f32 v{PR + 3}, v{dt}, v{PR + 3}'])
            cexp(W1, '1.0', T); cmul(Bs, PR + 2, PR + 4); cexp(W256, '0x43800000', T)
            r.append(f'v_sub_f32 v{Bs + 1}, 0, v{Bs + 1}')
            cmul(W2, W1, W1); put(Bs, [0]); cmul(W4, W2, W2); cmul(W8, W4, W4)
            src = Bs
            for q in range(1, 8):
                dst = P if src != P else Q
                cmul(dst, src, W1); put(dst, [q]); src = dst
            cur = Bs
            for s in range(1, 8):
                nxt = Bs + 2 if cur == Bs else Bs
                cmul(nxt, cur, W256); cur = nxt
                if s == 1:
                    put(cur, [8, 9]); cmul(P, cur, W2); put(P, [10]); cmul(Q, cur, W4); put(Q, [11, 12, 13])
                    cmul(P, Q, W2); put(P, [14]); cmul(Q, cur, W8); put(Q, [15])
                elif s < 4:
                    b = 16 + 4 * (s - 2)
                    put(cur, [b]); cmul(P, cur, W4); put(P, [b + 1]); cmul(Q, cur, W8); put(Q, [b + 2, b + 3])
                else:
                    b = 24 + 2 * (s - 4)
                    put(cur, [b]); cmul(P, cur, W8); put(P, [b + 1])
        else:
            cexp(W8, '0x41000000', T); cexp(W2, '0x43000000', T)
            r.extend([f'v_mov_b32 v{P}, 1.0', f'v_mov_b32 v{P + 1}, 0'])
            x, y, x2, y2 = P, Q, W2, W4
            for q in range(16):
                r.extend([f'v_cvt_pk_bf16_f32 v{T0 + 20}, v{x}, v{x + 1}', f'v_cvt_pk_bf16_f32 v{T0 + 21}, v{x2}, v{x2 + 1}',
                          f'ds_write2st64_b32 v{TA + q}, v{T0 + 20}, v{T0 + 21} offset0:{q} offset1:{q + 16}'])
                if q < 15: cmul(y, x, W8); cmul(y2, x2, W8)
                x, y, x2, y2 = y, x, y2, x2
        return r
    def kg_frag(self):
        return [[f'ds_read_b128 {v(FA + 4 * m, 4)}, v{RA + (m & 3)} offset:{8192 * (m >> 2)}',
                 f'ds_read_b128 {v(FB + 4 * m, 4)}, v{RA + 4 + (m & 3)} offset:{8192 * (m >> 2)}'] for m in range(8)]
    def kg_mfma(self): return [mfma16(KD, FA + 4 * m, FB + 4 * m, '0' if m == 0 else KD) for m in range(8)]
    def kg_sel(self, kind):
        PM = T0
        r = f'''v_and_b32 v174, 15, v0
v_lshrrev_b32 v175, 4, v0
v_lshl_add_u32 v174, s{sNh}, 4, v174
s_mul_i32 s64, s{sDD}, {KRS}
s_add_u32 s66, s64, {KR + 4096}
v_and_b32 v{PM + 11}, 31, v0
v_lshl_add_u32 v{PM + 11}, v{PM + 11}, 4, s66
v_mov_b32 v{PM + 16}, 0
v_mov_b32 v{PM + 17}, 0
v_mov_b32 v{PM + 18}, 0
v_mov_b32 v{PM + 19}, 0
'''
        if kind == 'U': r += f'''v_lshrrev_b32 v{PM + 12}, 1, v175
v_lshlrev_b32 v{PM + 12}, 9, v{PM + 12}
v_lshl_add_u32 v{PM + 12}, v174, 4, v{PM + 12}
v_and_b32 v175, 1, v175
v_lshl_add_u32 v{PM + 12}, v175, 3, v{PM + 12}
s_add_u32 s65, s64, {KR + 2 * 2044}
v_sub_u32 v{PM + 12}, s65, v{PM + 12}'''
        else: r += f'''v_cmp_gt_u32 vcc, 32, v0
v_add_u32 v{PM + 12}, 2, v175
v_lshlrev_b32 v175, 1, v175
v_cndmask_b32 v{PM + 12}, v175, v{PM + 12}, vcc
v_lshlrev_b32 v{PM + 12}, 9, v{PM + 12}
v_lshl_add_u32 v{PM + 12}, v174, 4, v{PM + 12}
s_add_u32 s65, s64, {KR + 2 * 2040 - 512}
v_sub_u32 v{PM + 12}, s65, v{PM + 12}
v_mov_b32 v{PM}, 0x3020302
v_mov_b32 v{PM + 1}, 0x5040504
v_mov_b32 v{PM + 2}, 0x1000302
v_mov_b32 v{PM + 3}, 0x1000100
v_cndmask_b32 v{PM + 4}, v{PM}, v{PM + 1}, vcc
v_cndmask_b32 v{PM + 5}, v{PM + 3}, v{PM + 2}, vcc
v_and_b32 v175, 33, v0
v_cmp_eq_u32 vcc, 32, v175
v_cndmask_b32 v{PM + 6}, v{PM}, v{PM + 2}, vcc'''
        return lines(r)
    def kg_exp(self, kind):
        PM, E = T0, FA
        g = [[f'ds_write_b128 v{PM + 11}, {v(PM + 16, 4)}']]
        if kind == 'U':
            return g + single(f'''v_cvt_pk_bf16_f32 v{E}, v{KD + 3}, v{KD + 2}
v_cvt_pk_bf16_f32 v{E + 1}, v{KD + 1}, v{KD}
ds_write_b64 v{PM + 12}, {v(E, 2)}''')
        g += single(f'v_cvt_pk_bf16_f32 v{PM + 8}, v{KD}, v{KD + 1}\nv_cvt_pk_bf16_f32 v{PM + 9}, v{KD + 2}, v{KD + 3}')
        for k, (hi, lo, sel) in enumerate(((9, 8, 4), (9, 8, 6), (9, 8, 5), (9, 8, 3), (9, 9, 0), (9, 9, 6), (9, 9, 3), (9, 9, 3))):
            g.append([f'v_perm_b32 v{E + k}, v{PM + hi}, v{PM + lo}, v{PM + sel}'])
        g.append([f'ds_write_b128 v{PM + 12}, {v(E, 4)} offset:512'])
        g.append(['s_mov_b32 exec_lo, 0', f'ds_write_b128 v{PM + 12}, {v(E + 4, 4)}', 's_mov_b64 exec, -1'])
        return g

    def wd_setup(self):
        return f'''v_lshrrev_b32 v24, 3, v0
v_bfe_u32 v25, v0, 4, 2
v_lshlrev_b32 v25, 1, v25
v_and_b32 v26, 7, v0
v_xor_b32 v25, v25, v26
v_lshlrev_b32 v25, 4, v25
v_lshl_or_b32 v{vWD}, v24, 10, v25
v_add_u32 v{vWD + 1}, 7168, v{vWD}
v_add_u32 v{vWD + 2}, 7168, v{vWD + 1}
v_add_u32 v{vWD + 3}, 7168, v{vWD + 2}
s_mul_i32 s{sWDo}, s{sWave}, {224 * 1024}
s_lshl_b32 s64, s{sDT}, 7
s_add_u32 s{sWDo}, s{sWDo}, s64
s_and_b32 s64, s{sWave}, 3
s_lshl_b32 s64, s64, 12
s_cmp_lt_u32 s{sWave}, 4
s_cselect_b32 s{sZ}, {XR + 16384}, {WR}
s_add_u32 s{sZ}, s{sZ}, s64
s_mov_b32 s{sZ + 1}, {XR + 32768}
s_cmp_lt_u32 s{sWave}, 4
s_cmov_b32 s{sZ + 1}, {WR + 16384}
s_add_u32 s{sZ + 1}, s{sZ + 1}, s64
s_lshl_b32 s64, s{sWave}, 12
s_add_u32 s{sZ + 2}, s64, {WR + 32768}
s_add_u32 s{sZ + 3}, s64, {UC}
v_bfe_u32 v24, v0, 2, 2
v_bfe_u32 v25, v0, 4, 1
v_lshl_add_u32 v24, v25, 2, v24
v_lshrrev_b32 v26, 1, v24
v_lshrrev_b32 v25, 5, v0
v_lshl_add_u32 v24, v25, 4, v24
v_lshlrev_b32 v24, 7, v24
v_lshl_or_b32 v24, v26, 5, v24
v_and_b32 v25, 3, v0
v_lshl_or_b32 v{vTR}, v25, 3, v24'''
    def wd_dma(self, s, after=None):
        g = [[f's_mov_b32 m0, s{sZ + self.zone[s]}']]
        for e in range(4):
            g.append([f'buffer_load_dwordx4 v{vWD + e}, {srd(sWD)}, s{sWDo} offen offset:{1024 * e} lds'])
        if after is not None: g[1] = [f'@wait r{after}'] + g[1]
        g[-1] += [f'@tok s{s}', f's_add_u32 s{sWDo}, s{sWDo}, 32768']
        return g
    def wd_read(self, s):
        g = [[f'v_add_u32 v{vTA}, s{sZ + self.zone[s]}, v{vTR}', f'v_xor_b32 v{vTA + 1}, 32, v{vTA}'],
             [f'v_xor_b32 v{vTA + 2}, 64, v{vTA}', f'v_xor_b32 v{vTA + 3}, 0x60, v{vTA}']]
        for k in range(4):
            R = WD + 16 * s + 4 * k
            g.append(([f'@wait s{s}'] if k == 0 else []) +
                     [f'ds_read_b64_tr_b16 {v(R, 2)}, v{vTA + k}', f'ds_read_b64_tr_b16 {v(R + 2, 2)}, v{vTA + k} offset:1024'])
        g[-1].append(f'@tok r{s}')
        return g
    def u_addr(self):
        return f'''s_lshr_b32 s65, s{sWave}, 1
s_lshl_b32 s64, s65, 3
v_add_u32 v{vPoll}, s64, v0
v_min_u32 v{vPoll}, 31, v{vPoll}
v_mov_b32 v{vUW}, s{sTT}
v_cmp_gt_u32 vcc, 9, v0
v_cndmask_b32 v{vPoll}, v{vUW}, v{vPoll}, vcc
s_lshl_b32 s64, s{sCh}, 12
s_lshl_b32 s65, s65, 10
s_add_u32 s64, s64, s65
s_add_u32 s{sU}, s64, {WS_XNT}
s_mul_i32 s64, s{sDD}, {4 * UCS}
s_add_u32 s64, s64, s65
s_add_u32 s64, s64, {UC + 32}
v_add_u32 v{vUW}, s64, v{vL16}'''
    def poll_fin(self): return f'v_lshlrev_b32 v{vPoll}, 7, v{vPoll}\nv_add_u32 v{vPoll}, {WS_FA}, v{vPoll}'
    UR = 232
    def u_loads(self):
        U = self.UR
        return [f'buffer_load_dwordx4 {v(U, 4)}, v{vL16}, {srd(sWS)}, s{sU} offen sc1',
                f'buffer_load_dwordx2 {v(U + 4, 2)}, v{vL16}, {srd(sWS)}, s{sU} offen offset:16 sc1']
    def u_copies(self):
        U = self.UR
        g = [[f'ds_write_b128 v{vUW}, {v(U, 4)}']]
        for k in range(4): g.append([f'v_alignbit_b32 v{U + 8 + k}, v{U + 1 + k}, v{U + k}, 16'])
        g.append([f'ds_write_b128 v{vUW}, {v(U + 8, 4)} offset:{UCS}'])
        for k in range(4): g.append([f'v_mov_b32 v{U + 12 + k}, v{U + 1 + k}'])
        g.append([f'ds_write_b128 v{vUW}, {v(U + 12, 4)} offset:{2 * UCS}'])
        for k in range(4): g.append([f'v_alignbit_b32 v{U + 16 + k}, v{U + 2 + k}, v{U + 1 + k}, 16'])
        g.append([f'ds_write_b128 v{vUW}, {v(U + 16, 4)} offset:{3 * UCS}'])
        g += single(f'''v_readfirstlane_b32 s64, v{U}
v_readfirstlane_b32 s65, v{U + 1}
v_mov_b32 v{U + 20}, 0
v_mov_b32 v{U + 21}, 0
v_mov_b32 v{U + 22}, 0
v_mov_b32 v{U + 23}, 0
v_lshrrev_b32 v{U + 6}, 1, v0
v_mul_u32_u24 v{U + 6}, {UCS}, v{U + 6}
v_and_b32 v{U + 7}, 1, v0
v_lshl_add_u32 v{U + 6}, v{U + 7}, 4, v{U + 6}
s_mul_i32 s66, s{sDD}, {4 * UCS}
s_add_u32 s66, s66, {UC}
v_add_u32 v{U + 6}, s66, v{U + 6}
s_lshl_b32 s66, s64, 16
v_writelane_b32 v{U + 23}, s66, 3
v_writelane_b32 v{U + 23}, s64, 5
v_writelane_b32 v{U + 22}, s66, 7
s_lshl_b64 s[66:67], s[64:65], 16
v_writelane_b32 v{U + 23}, s67, 7''')
        g.append(lines(f'''s_cmp_lt_u32 s{sWave}, 2
s_cselect_b64 exec, 0xff, 0
ds_write_b128 v{U + 6}, {v(U + 20, 4)}
s_mov_b64 exec, -1'''))
        return g

    def gemm1(self):
        a = self.a
        o = self.opt
        def reads(H, s):
            if 'noread' in o: return []
            Fn = F[s]; sx = 2 * (H & 1) + s; xo = 16384 * XS[H >> 1]; wo = 16384 * (H % 4) + 4096 * s
            def A(m): return [f'ds_read_b64_tr_b16 {v(Fn + 4 * m, 2)}, v{vWA + m} offset:{wo}',
                              f'ds_read_b64_tr_b16 {v(Fn + 4 * m + 2, 2)}, v{vWA + m} offset:{wo + 1024}']
            def B(n): return [f'ds_read_b128 {v(Fn + 8 + 4 * n, 4)}, v{vXA + sx} offset:{xo + 4096 * n}']
            return A(0) + B(0) + B(1) + A(1)
        def mf(s, t, first):
            return mfma32(ACC + 16 * t, F[s] + 4 * (t >> 1), F[s] + 8 + 4 * (t & 1), '0' if first else ACC + 16 * t)
        nod = 'nodma' in o
        HP = self.P('hp', 9)
        NV, NVT = self.P('nv', 4), self.P('nvt', 5)
        KT, KM = self.P('kt', 13), self.P('km', 18)
        e0 = self.early
        xdma = {1: [2], 3: [3], 5: [4], 7: [5], 8: [6], 9: [7]}
        wdd = {12: e0, 13: e0 + 1}
        if e0: wdd[8] = 0; xdma = {1: [2], 3: [3], 5: [4], 7: [5, 6], 9: [7]}
        wreg = {}
        if 'wreg' in o:
            wdd = {}
            sched = {0: [0]*16, 1: [0]*8 + [1, 1, 2, 2, 4, 4, 4, 4], 2: [0]*6 + [2,2,2,2,2,2,4,4,4,4], 3: [0]*4 + [2]*8 + [3]*4, 4: [0]*12 + [4]*4, 5: [2]*14 + [0, 0]}[o['wreg']]
            i = 0
            for H in range(16):
                wreg[H] = []
                for _ in range(sched[H]):
                    wreg[H].append([f'buffer_load_dwordx4 {v(184 + 4 * (i % 12), 4)}, v{vL16}, {srd(sWD)}, s95 offen offset:{1024 * (i & 3)}'] + (['s_add_u32 s95, s95, 4096'] if i & 3 == 3 else []))
                    i += 1
            a(f's_mul_i32 s95, s{sDT}, 8\ns_add_u32 s95, s95, s{sWave}\ns_mul_i32 s95, s95, {28 * 1024}')
        def step(k, W, nv, fixed=None):
            H, s = divmod(k, 2)
            rd = reads(H + s, 1 - s)
            gaps = [rd[:3], rd[3:], [], []]
            if s == 1 and not nod:
                d = []
                for D in xdma.get(H, []): d += self.dma_x(D)
                if H == HP: d += [self.poll_issue(vPoll, True)]
                if H <= 11: d += self.dma_w(H + 4)
                if H in wdd: d += self.wd_dma(wdd[H])
                d += wreg.get(H, [])[:2] if H < 12 else wreg.get(H, [])[:2]
                n = [len([x for x in g if x.startswith('buffer')]) for g in d]
                tot = sum(n); done = 0
                if tot > 2: gaps = [rd[:2], rd[2:4], rd[4:], []]
                prev = 0
                for g, c in zip(d, n):
                    t = min(3, done * 4 // tot) if tot > 2 else 2 + done
                    if not c: t = max(prev, t - 1)
                    gaps[t] = gaps[t] + g; done += c; prev = t
            elif s == 1 and H == HP: gaps[2] += self.poll_issue(vPoll, True)
            if s == 0 and H >= 1:
                for i, g in enumerate(wreg.get(H - 1, [])[2:]): gaps[2 + i] = gaps[2 + i] + g
            for t in range(4):
                if 'nomfma' not in o: a(mf(s, t, k == 0))
                a(gaps[t])
                if fixed and fixed.get((k, t)): a(fixed[(k, t)])
                a(W.take(nv))
            if s == 0:
                if k in (KT - 1, 26, 30) and any(x.startswith('ds_') for g in W.q for x in g): a(W.rest())
                tok = [f'w{H + 1}'] + ([f'x{(H + 1) // 2}'] if H & 1 else [])
                a('@wait lg ' + ('' if 'novm' in o else ' '.join(tok)))
                if 'nobar' not in o: a('s_barrier')
                if 'gst' in o and H in (1, 4, 7, 10, 12, 15): a(self.stamp_s(4 + (1, 4, 7, 10, 12, 15).index(H), True))
        a('@wait x0 w0\ns_barrier')
        a(reads(0, 0))
        self.stamp(1)
        a(f's_cmp_ge_u32 s{sWave}, 4\ns_cbranch_scc1 L_gv')
        for kind in ('U', 'V'):
            if kind == 'V': a('L_gv:')
            W = Weaver()
            tab = self.kg_tab(kind)
            if 'nokg' in o: tab = []
            if 'nokgw' in o: tab = [x for x in tab if not x.startswith('ds_')]
            if 'nokgc' in o: tab = [x for x in tab if not x.startswith('v_cvt')]
            W.each(tab)
            fixed = {}
            fr, km = self.kg_frag(), self.kg_mfma()
            for m, (dk, t) in enumerate([(0, 0), (0, 1), (0, 2), (0, 2), (0, 3), (0, 3), (1, 0), (1, 1)]):
                fixed.setdefault((KT + dk, t), []).extend(fr[m])
            for m in range(8): fixed.setdefault((KT + 1 + (m + 2) // 4, (m + 2) % 4), []).append(km[m])
            if 'nokm' in o: fixed = {}
            for k in range(KM):
                if k == KT: W.each(self.kg_sel(kind)); W.each(self.u_addr()); W.each(self.g_addr()); W.each(self.poll_fin())
                if k == KM - 1: W.add(*self.kg_exp(kind))
                step(k, W, NVT if k < KT else NV, fixed)
            a(W.rest())
            if kind == 'U': a('s_branch L_gm')
        a('L_gm:')
        side = {k: Weaver() for k in range(32)}
        k0 = 2 * (HP + 2) + 1
        side[k0].add(self.poll_check(vPoll, True) + self.u_loads() + lines(f'''buffer_load_dword v{vCS}, v{vCS + 1}, {srd(sWS)}, s{sCS} offen sc1
buffer_load_dword v{vCS + 1}, v{vCS + 1}, {srd(sWS)}, s{sCS} offen offset:64 sc1
buffer_load_dword v{vM}, v{vM + 1}, {srd(sWS)}, s{sST} offen sc1
buffer_load_dword v{vM + 1}, v{vM + 1}, {srd(sWS)}, s{sST} offen offset:256 sc1'''))
        side[k0].each(f'v_and_b32 v{vL4}, 31, v0\nv_lshlrev_b32 v{vL4}, 2, v{vL4}')
        if e0:
            side[21].add(*(self.wd_read(0) + [[]] * 4 + self.wd_dma(1, 0)))
            side[26].add(*self.wd_read(1))
        side[28].add(*self.u_copies())
        corr = ['v_cmp_gt_u32 vcc, 32, v0']
        for n in range(2):
            B, m = BP + 4 * n, vM + n
            corr += lines(f'''v_xor_b32 v{m}, 0x80000000, v{m}
v_cndmask_b32 v{m}, 0, v{m}, vcc
v_lshrrev_b32 v{B + 1}, 16, v{m}
v_or_b32 v{B}, v{m}, v{B + 1}''')
        for m in range(2):
            A, c = AP + 4 * m, vCS + m
            corr += lines(f'''v_and_b32 v26, s{sMask}, v{c}
v_sub_f32 v26, v{c}, v26
v_and_b32 v27, s{sMask}, v26
v_sub_f32 v27, v26, v27
v_perm_b32 v{A}, v26, v{c}, s{sSel}
v_lshrrev_b32 v{A + 1}, 16, v27''')
        side[24].each([f'v_mov_b32 v{AP + 4 * m + r}, 0' for m in range(4) for r in (2, 3)])
        side[29].each(corr)
        W = Weaver()
        for k in range(KM, 31):
            W.q += side[k].q
            step(k, W, NV)
        if not nod and 'wreg' not in o: W.q = W.q + self.wd_dma(e0 + 2)
        def epi(t):
            A = ACC + 16 * t; O = F[0] + 4 * t
            r = [f'v_max_f32 v{A + i}, 0, v{A + i}' for i in range(8)]
            r += [f'v_mul_f32 v{A + i}, v{A + i}, v{A + 8 + i}' for i in range(8)]
            r += [f'v_cvt_pk_bf16_f32 v{O + i}, v{A + 2 * i}, v{A + 2 * i + 1}' for i in range(4)]
            r += [f'buffer_store_dwordx4 {v(O, 4)}, v{vH}, {srd(sWS)}, s{sH0 + (t & 1)} offen offset:{512 * (t >> 1)} sc1', '@tok hst']
            if self.P('hdup', 0):
                r += [f's_add_u32 s95, s{sH0 + (t & 1)}, 0x700000', f'buffer_store_dwordx4 {v(O, 4)}, v{vH}, {srd(sWS)}, s95 offen offset:{512 * (t >> 1)}' + (' sc1' if self.P('hdup', 0) == 2 else '')]
            return r
        for t in range(4):
            a(mf(1, t, False))
            a(W.rest() if t == 0 else W.take(6))
            a(mfma32(ACC + 16 * t, AP + 4 * (t >> 1), BP + 4 * (t & 1), ACC + 16 * t))
            if t >= 1: W.each(epi(t - 1))
            a(W.take(6))
        self.stamp(2)
        W.each(epi(3))
        a(W.rest())
        self.stamp(3)

    def role_s(self):
        a = self.a
        sQ, sLine = sI, sJ
        X, WB, M, U, SA, SF = 32, 64, 128, 160, 136, 152
        a(f'''L_role_s:
s_lshl_b32 s{sQ}, s{sXcd}, 2
s_add_u32 s{sQ}, s{sQ}, s{sSlot}
s_lshl_b32 s64, s{sQ}, 3
s_add_u32 s64, s64, s{sWave}
s_lshl_b32 s64, s64, 13
s_add_u32 s65, s64, 4096
s_lshr_b32 s66, s{sXcd}, 1
s_lshl_b32 s66, s66, 2
s_add_u32 s68, s66, s{sSlot}
s_min_u32 s66, s68, 13
s_and_b32 s67, s{sXcd}, 1
s_mul_i32 s67, s67, 14
s_add_u32 s{sLine}, s66, s67
v_lshrrev_b32 v2, 3, v0
v_mul_u32_u24 v2, 3584, v2
v_and_b32 v3, 7, v0
v_lshl_add_u32 v2, v3, 4, v2
s_and_b32 s66, s{sWave}, 3
s_mul_i32 s66, s66, {128 * 3584}
s_lshl_b32 s67, s{sLine}, 7
s_add_u32 s{sKW}, s66, s67
v_and_b32 v3, 31, v0
v_lshlrev_b32 v{vL4}, 2, v3
v_mov_b32 v3, 0
s_cmp_ge_u32 s{sWave}, 4
s_cselect_b32 s{sW}, s26, s24
s_cselect_b32 s{sW + 1}, s27, s25''')
        a(self.srds([(sX, 4), (sWS, 34)]))
        self.stamp(0)
        if self.prof: a('v_writelane_b32 v15, s96, 10')
        a(f'buffer_load_dword v14, v3, {srd(sWS)}, 0 offen sc1')
        for r in range(8):
            a(f'buffer_load_dwordx4 {v(X + 4 * r, 4)}, v{vL16}, {srd(sX)}, s{64 + r // 4} offen offset:{1024 * (r % 4)}')
        a(self.srds([(sWD, 28), (sOUT, 30), (sDBG, 32)]))
        a('v_bfe_u32 v4, v0, 2, 2\nv_mov_b32 v5, 0x3f803f80')
        for g in range(4):
            a(f'v_cmp_eq_u32 vcc, {g}, v4\nv_cndmask_b32 v{SA + 4 * g}, 0, v5, vcc\nv_cndmask_b32 v{SF + g}, 0, 1.0, vcc')
            for r in range(1, 4): a(f'v_mov_b32 v{SA + 4 * g + r}, v{SA + 4 * g}')
        a('s_barrier')
        l = self.L('mknonce')
        a(f'''s_or_b32 s64, s2, s{sWave}
s_cmp_lg_u32 s64, 0
s_cbranch_scc1 {l}
v_add_u32 v14, 1, v14
v_max_u32 v14, 1, v14
s_mov_b64 exec, 1
buffer_store_dword v14, v3, {srd(sDBG)}, 0 offen sc1
buffer_store_dword v14, v3, {srd(sWS)}, 0 offen sc1
s_mov_b64 exec, -1
{l}:''')
        a(self.param_loads())
        wl = Weaver()
        for e in range(16):
            wl.add([f'buffer_load_dwordx4 {v(WB + 4 * e, 4)}, v2, {srd(sW)}, s{sKW} offen', f's_add_u32 s{sKW}, s{sKW}, {8 * 3584}'])
        self.cnt = 0
        def b(s):
            for x in lines(s):
                a(x); self.cnt += 1
                if self.cnt % self.P('sw', 12) == 0: a(wl.take(1))
        a(wl.take(2 * self.P('sw0', 2)))
        self.stamp(11)
        for r in range(8): b(mfma16(M + 4 * (r >> 2), SA + 4 * (r & 3), X + 4 * r, '0' if r & 3 == 0 else M + 4 * (r >> 2)))
        self.stamp(1)
        for r in range(8):
            B = U + 8 * r; P = X + 4 * r
            for k in range(4): b(f'v_lshlrev_b32 v{B + 2 * k}, 16, v{P + k}\nv_and_b32 v{B + 2 * k + 1}, s{sMask}, v{P + k}')
            b(f'v_pk_mul_f32 {v(P, 2)}, {v(B, 2)}, {v(B, 2)}')
            for k in range(1, 4): b(f'v_pk_fma_f32 {v(P, 2)}, {v(B + 2 * k, 2)}, {v(B + 2 * k, 2)}, {v(P, 2)}')
            b(f'v_add_f32 v{P}, v{P}, v{P + 1}')
        for r in range(8):
            D = 224 + 4 * (r >> 2)
            b(f"v_mfma_f32_16x16x4_f32 {v(D, 4)}, v{SF + (r & 3)}, v{X + 4 * r}, {'0' if r & 3 == 0 else v(D, 4)}")
        for sh in (8, 4, 2, 1):
            for R in (M, M + 4): b(f'v_add_f32_dpp v{R}, v{R}, v{R} row_ror:{sh} row_mask:0xf bank_mask:0xf')
        for sh in (8, 4, 2, 1):
            for R in (224, 228): b(f'v_add_f32_dpp v{R}, v{R}, v{R} row_ror:{sh} row_mask:0xf bank_mask:0xf')
        b(f'''v_and_b32 v9, 8, v0
v_cmp_eq_u32 vcc, 0, v9
v_cndmask_b32 v9, v{M + 4}, v{M}, vcc
v_cndmask_b32 v12, v228, v224, vcc
v_mul_f32 v9, 0x3b000000, v9
v_cvt_pk_bf16_f32 v26, v9, v9
v_mul_f32 v9, v9, v9
v_mul_f32 v12, 0x3b000000, v12
v_sub_f32 v12, v12, v9
v_and_b32 v26, s{sMask}, v26
v_max_f32 v12, 0, v12
v_cvt_pk_bf16_f32 v12, v12, v12
v_and_b32 v12, s{sMask}, v12
v_add_f32 v12, 0x3727c5ac, v12
v_cvt_pk_bf16_f32 v12, v12, v12
v_and_b32 v12, s{sMask}, v12
v_sqrt_f32 v12, v12
v_cvt_pk_bf16_f32 v12, v12, v12
v_and_b32 v12, s{sMask}, v12
v_rcp_f32 v13, v12
v_fma_f32 v14, -v12, v13, 1.0
v_fma_f32 v13, v14, v13, v13
v_mul_f32 v27, v13, v13
v_mul_f32 v12, v26, v13
v_sub_f32 v12, 0, v12''')
        for r in range(8):
            ln = 16 * (r & 3) + 8 * (r >> 2)
            b(f'v_readlane_b32 s{4 + 2 * r}, v13, {ln}\nv_readlane_b32 s{5 + 2 * r}, v12, {ln}')
        for r in range(8):
            B = U + 8 * r; sp = f's[{4 + 2 * r}:{5 + 2 * r}]'
            for k in range(4): b(f'v_pk_fma_f32 {v(B + 2 * k, 2)}, {v(B + 2 * k, 2)}, {sp}, {sp} op_sel:[0,0,1] op_sel_hi:[1,0,1]')
        T = X
        b(f'''v_and_b32 v9, 7, v0
v_xor_b32 v9, s{sWave}, v9
v_lshlrev_b32 v9, 4, v9
v_lshl_or_b32 v9, v0, 10, v9''')
        for e in range(8):
            for p in range(4): b(f'v_cvt_pk_bf16_f32 v{T + 4 * e + p}, v{U + 16 * p + e}, v{U + 16 * p + 8 + e}')
            b(f'ds_write_b128 v9, {v(T + 4 * e, 4)} offset:{ST + 128 * e}')
        a(wl.rest())
        a(f'''buffer_load_dword v28, v3, {srd(sDBG)}, 0 offen sc1
s_lshl_b32 s64, s{sWave}, 13
v_add_u32 v9, s64, v{vL16}
v_lshrrev_b32 v12, 3, v0
v_and_b32 v13, 7, v0
v_lshlrev_b32 v13, 4, v13
v_lshl_or_b32 v12, v12, 12, v13
v_lshrrev_b32 v14, 4, v0
v_bfe_u32 v13, v0, 3, 1
v_lshl_add_u32 v14, v13, 2, v14
v_lshlrev_b32 v14, 3, v14
s_lshl_b32 s66, s{sQ}, 3
s_add_u32 s66, s66, s{sWave}
s_lshl_b32 s66, s66, 6
s_add_u32 s66, s66, {WS_STATS}
s_lshl_b32 s64, s{sWave}, 18
s_lshl_b32 s65, s{sQ}, 7
s_add_u32 s64, s64, s65
s_add_u32 s64, s64, {WS_XNT}
@wait lg
s_barrier''')
        self.stamp(2)
        for e in range(8): a(f'v_xor_b32 v13, {16 * e}, v9\nds_read_b128 {v(T + 4 * e, 4)}, v13 offset:{ST + 1024 * e}')
        a(f'''s_mov_b32 exec_lo, 0x01010101
s_mov_b32 exec_hi, 0x01010101
buffer_store_dwordx2 v[26:27], v14, {srd(sWS)}, s66 offen sc1
s_mov_b64 exec, -1''')
        for e in range(8):
            a(f'buffer_store_dwordx4 {v(T + 4 * e, 4)}, v12, {srd(sWS)}, s64 offen sc1\n@tok xst\ns_add_u32 s64, s64, 32768')
        ONES = 4
        a('v_and_b32 v9, 15, v0\nv_mov_b32 v12, 0x3f80\nv_mov_b32 v13, 0x3f800000')
        for k in range(4):
            a(f'''v_cmp_eq_u32 vcc, {2 * k}, v9
v_cndmask_b32 v{ONES + k}, 0, v12, vcc
v_cmp_eq_u32 vcc, {2 * k + 1}, v9
v_cndmask_b32 v{ONES + k}, v{ONES + k}, v13, vcc''')
        for e in range(16): a(mfma16(M, ONES, WB + 4 * e, '0' if e == 0 else M))
        a(f'''v_and_b32 v9, 7, v0
v_lshrrev_b32 v12, 4, v0
v_lshlrev_b32 v12, 4, v12
v_lshl_or_b32 v9, v9, 5, v12
s_lshl_b32 s64, s{sWave}, 8
s_add_u32 s64, s64, {CSP}
v_add_u32 v9, s64, v9''')
        for r in range(4): a(f'v_add_f32_dpp v{M + r}, v{M + r}, v{M + r} row_ror:8 row_mask:0xf bank_mask:0xf')
        a(f'''s_mov_b64 exec, 0x00ff00ff
ds_write_b128 v9, {v(M, 4)}
s_mov_b64 exec, -1
@wait lg
s_barrier''')
        self.stamp(12)
        l, l1, l2, sp = self.L('pub'), self.L('nocs'), self.L('nonce_ok'), self.L('nonce_spin')
        a(f'''s_cmp_lg_u32 s{sWave}, 0
s_cbranch_scc1 {l1}
s_cmp_ge_u32 s68, 14
s_cbranch_scc1 {l1}
v_lshlrev_b32 v9, 2, v0
v_add_u32 v12, {CSP}, v9''')
        for k in range(8): a(f'ds_read_b32 v{M + k}, v12 offset:{256 * k}')
        a(f's_lshl_b32 s64, s{sLine}, 9\ns_add_u32 s64, s64, {WS_CS}')
        for m in range(2):
            B = M + 4 * m
            a(f'''v_add_f32 v{B}, v{B}, v{B + 1}
v_add_f32 v{B + 2}, v{B + 2}, v{B + 3}
v_add_f32 v{B}, v{B}, v{B + 2}
buffer_store_dword v{B}, v9, {srd(sWS)}, s64 offen offset:{256 * m} sc1''')
        a(f'{l1}:')
        a(self.kg_addr())
        a(f'''s_waitcnt vmcnt(0)
s_barrier''')
        self.stamp(3)
        a(f'''s_cmp_lg_u32 s{sWave}, 0
s_cbranch_scc1 {l}
s_mov_b32 s69, 0
{sp}:
v_readfirstlane_b32 s64, v28
s_cmp_lg_u32 s64, 0
s_cbranch_scc1 {l2}
buffer_load_dword v28, v3, {srd(sDBG)}, 0 offen sc1
s_add_u32 s69, s69, 1
s_waitcnt vmcnt(0)
s_cmp_le_u32 s69, {SPIN}
s_cbranch_scc1 {sp}
{l2}:
s_lshl_b32 s64, s{sQ}, 7
s_add_u32 s64, s64, {WS_FA}
buffer_store_dword v28, v{vL4}, {srd(sWS)}, s64 offen sc1
s_cmp_ge_u32 s68, 14
s_cbranch_scc1 {l}
s_lshl_b32 s64, s{sLine}, 7
s_add_u32 s64, s64, {WS_FB}
buffer_store_dword v28, v{vL4}, {srd(sWS)}, s64 offen sc1
{l}:''')
        a(self.wd_setup())
        a(f's_cmp_ge_u32 s{sWave}, 4\ns_cbranch_scc1 L_sv')
        for kind in ('U', 'V'):
            if kind == 'V': a('L_sv:')
            a(self.kg_tab(kind))
            a('@wait lg\ns_barrier')
            a(self.kg_frag()); a(self.kg_sel(kind)); a(self.kg_mfma())
            a('s_barrier')
            a(self.kg_exp(kind))
            if kind == 'U': a('s_branch L_sm')
        a('L_sm:')
        for s in range(self.early):
            a(self.wd_dma(s, s - 1 if s else None)); a(self.wd_read(s))
        if self.early: a('@wait lg\ns_barrier')
        for s in range(self.early, self.npre): a(self.wd_dma(s))
        a(self.u_addr()); a(self.poll_fin())
        a(self.poll_issue(vPoll, True)); a(self.poll_check(vPoll, True))
        a(self.u_loads()); a(self.u_copies())
        a(f'''s_lshl_b32 s{sFH}, s{sWave}, 7
s_add_u32 s{sFH}, s{sFH}, {WS_FH + 1792 * 128}
s_waitcnt vmcnt(0) lgkmcnt(0)
s_barrier
s_branch L_post''')

    def conv(self):
        a = self.a
        Y = 56
        a(f'''L_post:
v_and_b32 v8, 15, v0
v_lshrrev_b32 v9, 4, v0
v_add_u32 v3, 1, v8
v_and_b32 v4, 3, v3
v_sub_u32 v3, v3, v4
v_lshl_add_u32 v3, v9, 3, v3
v_mul_u32_u24 v4, {UCS}, v4
v_lshl_add_u32 v1, v3, 1, v4
s_lshl_b32 s64, s{sRh}, 8
s_mul_i32 s65, s{sDD}, {4 * UCS}
s_add_u32 s65, s65, s64
s_add_u32 s65, s65, {UC}
v_add_u32 v1, s65, v1
v_lshlrev_b32 v3, 5, v8
v_lshlrev_b32 v4, 4, v9
v_sub_u32 v4, v4, v3
s_mul_i32 s65, s{sDD}, {KRS}
s_add_u32 s65, s65, s64
s_add_u32 s65, s65, {KR + 2 * (2032 - 1792)}
v_add_u32 v2, s65, v4
s_cmp_eq_u32 s{sNh}, 1
s_cbranch_scc1 L_conv1''')
        adr = f'''s_lshl_b32 s64, s{sWave}, 11
s_add_u32 s64, s64, {RED}
v_add_u32 v5, s64, v{vL16}
v_xor_b32 v6, 8192, v5
s_mul_i32 s64, s{sTT}, 56
s_mul_i32 s65, s{sWave}, 7
s_add_u32 s64, s64, s65
v_min_u32 v7, 6, v0
v_add_u32 v7, s64, v7
v_lshlrev_b32 v7, 7, v7
v_add_u32 v7, {WS_FH}, v7
s_lshl_b32 s64, s{sRh}, 2
s_add_u32 s65, s64, s{sNh}
s_sub_u32 s68, 3, s{sNh}
s_add_u32 s68, s68, s64
v_lshl_or_b32 v3, v9, 3, v3
s_mul_i32 s64, s{sDD}, {4 * UCS}
s_add_u32 s64, s64, {UC + 32}
v_add_u32 v24, s64, v3
s_lshl_b32 s65, s65, 9
s_lshl_b32 s68, s68, 9
v_add_u32 v25, s68, v24
v_add_u32 v24, s65, v24
v_sub_u32 v3, v3, v{vL16}
v_add_u32 v3, v3, v6
v_lshlrev_b32 v26, 2, v{vL4}
v_mov_b32 v27, s65
v_mov_b32 v4, s68
v_cmp_gt_u32 vcc, 32, v0
v_cndmask_b32 v27, v4, v27, vcc
v_add_u32 v26, v26, v27
s_lshl_b32 s64, s{sCh}, 12
s_add_u32 s{sH1}, s64, {WS_YT}
s_lshl_b32 s64, s{sTT}, 2
s_mul_i32 s64, s64, 56
s_mul_i32 s65, s{sWave}, 7
s_add_u32 s64, s64, s65
s_lshl_b32 s64, s64, 10
s_add_u32 s{sKW}, s64, {WS_H}
s_add_u32 s{sKX}, s{sKW}, 4096'''
        FHP = self.P('fhp', 54)
        self.nc = self.P('nc', 1)
        for var, alphas in ((0, (0, 3, 4, 7)), (1, (1, 2, 5, 6))):
            a(f'L_conv{var}:')
            seq = []
            for it in range(4):
                o = []
                for idx, al in enumerate(alphas):
                    for be in range(al + 1): o.append((max(be, al - be), idx, be, al - be))
                o.sort(reverse=(it > 0))
                seq += [(it, idx, be, ga) for _, idx, be, ga in o]
            last = {}; order = []
            for i, (it, idx, be, ga) in enumerate(seq):
                for key in ((it, 'A', ga), (it, 'B', be)):
                    if key not in last: order.append(key)
                    last[key] = i
            free = [112 + 4 * k for k in range(8)] + [96 + 4 * k for k in range(4)] + [72 + 4 * k for k in range(6)] + [32 + 4 * k for k in range(6)]
            slot = {}
            def load():
                key = order.pop(0); r = free.pop(0); slot[key] = r
                it, kind, q = key
                if kind == 'A':
                    return [f'ds_read_b64 {v(r, 2)}, v1 offset:{512 * q + 64 * it}', f'ds_read_b64 {v(r + 2, 2)}, v1 offset:{512 * q + 64 * it + 8}']
                return [f'ds_read_b128 {v(r, 4)}, v2 offset:{512 * (7 - q) + 64 * it}']
            for _ in range(self.P('cpre', 8)): a(load())
            side = {}
            def at(i, groups): side.setdefault(i, []).extend(groups)
            w = Weaver(); w.each(adr); at(0, w.q)
            for s in range(self.early, self.npre): at(20, self.wd_read(s))
            at(FHP, [['@wait hst', self.flag(sFH)]])
            for s in range(self.npre, self.npre + self.nc): at(FHP, self.wd_dma(s, s - 3))
            if 'cst' in self.opt:
                side[FHP] = [lines(self.stamp_s(13))] + side[FHP][:1] + [lines(self.stamp_s(14))] + side[FHP][1:]
            W = Weaver(); first = set()
            for i, (it, idx, be, ga) in enumerate(seq):
                while (it, 'A', ga) not in slot or (it, 'B', be) not in slot: a(load())
                a(mfma16(Y + 4 * idx, slot[(it, 'A', ga)], slot[(it, 'B', be)], Y + 4 * idx if idx in first else '0'))
                first.add(idx)
                for key in ((it, 'A', ga), (it, 'B', be)):
                    if last[key] == i: free.append(slot[key])
                if i == FHP: W.q = side[i] + W.q
                else: W.add(*side.get(i, []))
                if order and free: a(load())
                a(W.take(2))
            a(W.rest())
            if var == 0: a('s_branch L_convdone')
        a('L_convdone:')
        self.stamp(4)
        l = self.L('swap')
        a(f'''ds_read_b64 v[40:41], v24
ds_read_b64 v[42:43], v25
s_cmp_eq_u32 s{sRh}, 0
s_nop 4
s_cbranch_scc1 {l}''')
        for r in range(8): a(f'v_swap_b32 v{Y + r}, v{Y + 8 + r}')
        a(f'''{l}:
ds_write_b128 v5, {v(Y + 8, 4)}
ds_write_b128 v5, {v(Y + 12, 4)} offset:1024''')
        if self.P('pollpos', 0) == 0: a(self.poll_issue(7, False))
        for t in range(2):
            for k in range(2):
                a(f'''v_lshlrev_b32 v44, 16, v{40 + 2 * t + k}
v_and_b32 v45, s{sMask}, v{40 + 2 * t + k}
v_fmac_f32 v{Y + 4 * t + 2 * k}, v44, v{vDsk}
v_fmac_f32 v{Y + 4 * t + 2 * k + 1}, v45, v{vDsk}''')
        a('''@wait lg
s_barrier
ds_read_b128 v[32:35], v6
ds_read_b128 v[36:39], v6 offset:1024''')
        for t in range(2):
            for r in range(4): a(f'v_add_f32 v{Y + 4 * t + r}, v{Y + 4 * t + r}, v{32 + 4 * t + r}')
        for t in range(2):
            for k in range(2): a(f'v_cvt_pk_bf16_f32 v{46 + 2 * t + k}, v{Y + 4 * t + 2 * k}, v{Y + 4 * t + 2 * k + 1}')
            a(f'ds_write_b64 v3, {v(46 + 2 * t, 2)} offset:{512 * t}')
        a('ds_read_b128 v[32:35], v6')
        self.stamp(5)

    def gemm2(self):
        a = self.a
        HB, AC, RT, SUM, YD = 88, (72, 56), 40, 32, 16
        DIST, YPOS, NF, H0 = self.P('dist', 10), self.P('ypos', -1), self.P('nf', 8), self.P('h0', 4)
        sHL = (sKW, sKX)
        def hload(n):
            q, s = divmod(n, 7)
            r = [f'buffer_load_dwordx4 {v(HB + 4 * (n % 14), 4)}, v{vL16}, {srd(sWS)}, s{sHL[s // 4]} offen offset:{1024 * (s % 4)} sc1']
            if s == 6: r += [f's_add_u32 s{sKW}, s{sKW}, {HBLK}', f's_add_u32 s{sKX}, s{sKX}, {HBLK}']
            return r
        ystore = [f'buffer_store_dwordx4 v[32:35], v26, {srd(sWS)}, s{sH1} offen sc1', '@tok yst']
        late = list(range(self.npre + self.nc, 7))
        if YPOS < 0: a(ystore)
        if self.P('pollpos', 0) == 1: a(self.poll_issue(7, False))
        for s in late: a(self.wd_dma(s, s - 3 if self.zone[s] != 3 else None))
        a(f'''v_lshrrev_b32 v3, 5, v0
v_lshl_or_b32 v5, v3, 10, v{vL4}
s_lshl_b32 s64, s{sTT}, 5
s_add_u32 s64, s64, s{sWave}
s_lshl_b32 s65, s64, 4
s_lshl_b32 s64, s64, 11
s_lshl_b32 s68, s{sDT}, 7
s_add_u32 s{sOut}, s64, s68
v_lshlrev_b32 v4, 3, v3
s_add_u32 s65, s65, {WS_STATS + 4}
s_mov_b32 s64, s{sOut}''')
        xr = []
        for q in range(4):
            xr += [[f'buffer_load_dword v{24 + q}, v4, {srd(sWS)}, s65 offen offset:{128 * q} sc1'],
                   [f'buffer_load_dword v{28 + q if q != 2 else 23}, v5, {srd(sX)}, s64 offen', 's_add_u32 s64, s64, 16384']]
        XRG = [28, 29, 23, 31]
        a(self.poll_check(7, False))
        self.stamp(6)
        for n in range(H0):
            if n == YPOS: a(ystore)
            a(hload(n))
        a(f'''v_and_b32 v8, 15, v0
v_mul_u32_u24 v1, 272, v8
v_lshrrev_b32 v8, 4, v0
v_lshl_add_u32 v1, v8, 4, v1
s_mul_i32 s66, s{sWave}, 4352
s_add_u32 s66, s66, {PART[0]}
v_add_u32 v1, s66, v1
v_lshl_add_u32 v9, s{sWave}, 1, v3
v_mul_u32_u24 v2, 272, v9
v_lshl_add_u32 v2, v{vL4}, 1, v2
v_add_u32 v2, {PART[0]}, v2
v_mul_u32_u24 v3, {YLS}, v9
v_add_u32 v3, v3, v{vL4}
s_add_u32 s66, s{sXcd}, 1
s_bfe_u32 s66, s66, 0x10001
s_lshl_b32 s66, s66, 1
s_and_b32 s67, s{sXcd}, 4
s_add_u32 s66, s66, s67
s_lshl_b32 s67, s{sDT}, 3
s_add_u32 s67, s67, s{sWave}
s_lshl_b32 s68, s67, 5
s_add_u32 s66, s66, s68
v_bfe_u32 v7, v0, 1, 2
v_and_b32 v8, 1, v0
v_lshl_add_u32 v7, v7, 3, v8
v_add_u32 v7, s66, v7
v_lshlrev_b32 v7, 7, v7
v_add_u32 v7, {WS_FY}, v7
v_lshrrev_b32 v9, 3, v0
v_and_b32 v6, 7, v0
v_lshlrev_b32 v8, 4, v6
v_lshl_or_b32 v8, v9, 12, v8
s_lshl_b32 s67, s67, 15
s_lshl_b32 s68, s{sTT}, 7
s_add_u32 s67, s67, s68
s_add_u32 s{sU}, s67, {WS_YT}
v_mul_u32_u24 v6, {8 * YLS}, v6
v_lshl_add_u32 v9, v9, 1, v6
s_lshl_b32 s66, s{sWave}, 4
v_add_u32 v9, s66, v9
s_lshl_b32 s66, s2, 3
s_add_u32 s66, s66, s{sWave}
s_lshl_b32 s66, s66, 7
s_add_u32 s{sFH}, s66, {WS_FY}''')
        for n in range(H0, DIST):
            if n == YPOS: a(ystore)
            a(hload(n))
        if YPOS < 0 and self.P('yf', 0) == 0: a(['@wait yst', self.flag(sFH)])
        for s in range(self.npre, 7): a(self.wd_read(s))
        self.stamp(7)
        def pwrite(q):
            g = [[f'v_add_u32 v1, {PART[1] - PART[0]}, v1']] if q else []
            return g + [[f'ds_write_b128 v1, {v(AC[q & 1] + 4 * k, 4)} offset:{64 * k}'] for k in range(4)]
        def pread(q):
            g = [[f'v_add_u32 v2, {PART[1] - PART[0]}, v2']] if q else []
            return g + [[f'ds_read_b64 {v(RT + 2 * w, 2)}, v2 offset:{4352 * w}'] for w in range(8)]
        def psum(q):
            r = []
            for st in (8, 4, 2):
                for i in range(st): r.append(f'v_add_f32 v{RT + i}, v{RT + i}, v{RT + st + i}')
            return r + lines(f'''v_lshlrev_b32 v{SUM + 2 * q}, 16, v{XRG[q]}
v_and_b32 v{SUM + 2 * q + 1}, s{sMask}, v{XRG[q]}
v_fmac_f32 v{SUM + 2 * q}, v{RT}, v{24 + q}
v_fmac_f32 v{SUM + 2 * q + 1}, v{RT + 1}, v{24 + q}''')
        yscat = []
        for i in range(4):
            yscat += [[f'ds_write_b16 v9, v{YD + i} offset:{YL + YLS * 2 * i}'], [f'ds_write_b16_d16_hi v9, v{YD + i} offset:{YL + YLS * (2 * i + 1)}']]
        W = Weaver(); V = Weaver()
        for n in range(28):
            q, s = divmod(n, 7)
            if s == 0 and q > 0:
                if q == 1: W.add(['@wait lg', 's_barrier'])
                W.add(*pwrite(q - 1)); W.add(*[[]] * self.P('bdel', 6)); W.add(['@wait lg', 's_barrier']); W.add(*pread(q - 1)); W.each(psum(q - 1))
            if n < 2: V.add(*xr[4 * n:4 * n + 4])
            if n + DIST < 28: V.add(hload(n + DIST))
            if (YPOS >= 0 and n == YPOS) or (YPOS < 0 and self.P('yf', 0) and n == self.P('yf', 0) - 1): V.add(['@wait yst', self.flag(sFH)])
            if n == NF: V.add(self.poll_issue(7, False))
            if n == NF + DIST:
                V.add(self.poll_check(7, False) + [f'buffer_load_dwordx4 {v(YD, 4)}, v8, {srd(sWS)}, s{sU} offen sc1'])
            if n == NF + 2 * DIST: W.add(*yscat); yscat = []
            for k in range(4):
                a(mfma16(AC[q & 1] + 4 * k, WD + 16 * s + 4 * k, HB + 4 * (n % 14), '0' if s == 0 else AC[q & 1] + 4 * k))
                if k == 3: a(V.rest())
                elif n > 0 or k > 0: a(W.take(2))
        a(W.rest())
        self.stamp(8)
        a(pwrite(3)); a(yscat)
        a('@wait lg\ns_barrier')
        for q in range(4): a(f'ds_read_b32 v{YD + q}, v3 offset:{YL + 16 * YLS * q}')
        a(pread(3))
        def fin(q):
            return f'''v_lshlrev_b32 v20, 16, v{YD + q}
v_and_b32 v21, s{sMask}, v{YD + q}
v_add_f32 v20, v20, v{SUM + 2 * q}
v_add_f32 v21, v21, v{SUM + 2 * q + 1}
v_cvt_pk_bf16_f32 v{YD + q}, v20, v21
buffer_store_dword v{YD + q}, v5, {srd(sOUT)}, s{sOut} offen
s_add_u32 s{sOut}, s{sOut}, 16384'''
        for q in range(3): a(fin(q))
        a(psum(3)); a(fin(3))
        self.stamp(9)
        if self.prof:
            a(f'''s_lshl_b32 s64, s2, 3
s_add_u32 s64, s64, s{sWave}
s_lshl_b32 s64, s64, 6
s_add_u32 s64, s64, {WS_PROF}
s_memrealtime s[98:99]
s_waitcnt lgkmcnt(0)
v_writelane_b32 v15, s98, 15
v_lshlrev_b32 v5, 2, v0
s_mov_b64 exec, 0xffff
buffer_store_dword v15, v5, {srd(sWS)}, s64 offen''')
            if 'dbgwg' in self.opt:
                a(f'''s_cmp_lg_u32 s2, {self.opt['dbgwg']}
s_cbranch_scc1 L_exit
s_cmp_lg_u32 s{sWave}, 0
s_cbranch_scc1 L_exit
v_readlane_b32 s64, v15, 0
v_subrev_u32 v15, s64, v15
s_mov_b64 exec, 0xfffe
buffer_store_dword v15, v5, {srd(sDBG)}, 0 offen''')
        a('L_exit:\ns_endpgm')

    def build(self):
        self.prologue(); self.g_start(); self.gemm1(); self.conv(); self.gemm2()
        self.role_s()
        self.a(self.tail)
        body = self.a.finish()
        ref = open(f'cdna_kernels/{NAME}.s.ref').read()
        head = [l for l in ref.split('\n') if l.startswith(';') and '@launch' not in l]
        s = '\n'.join(head) + f'\n; @launch grid=(256,1,1) block=(512,1,1) lds={LDS_SIZE}\n'
        s += f'''.amdgcn_target "amdgcn-amd-amdhsa--gfx950"
.text
.globl {NAME}_kernel
.p2align 8
.type {NAME}_kernel,@function
{NAME}_kernel:
''' + body
        s += f'''.section .rodata,"a"
.p2align 6
.amdhsa_kernel {NAME}_kernel
  .amdhsa_next_free_vgpr 256
  .amdhsa_next_free_sgpr 102
  .amdhsa_accum_offset 256
  .amdhsa_group_segment_fixed_size 0
  .amdhsa_kernarg_size 128
  .amdhsa_user_sgpr_count 2
  .amdhsa_user_sgpr_kernarg_segment_ptr 1
  .amdhsa_system_sgpr_workgroup_id_x 1
.end_amdhsa_kernel
'''
        return s

if __name__ == '__main__':
    open(sys.argv[1], 'w').write(Gen(sys.argv[2:]).build())
```
